```python
import torch

def _softmax(x, axis=-1):
    return torch.softmax(x, dim=axis)
def _gelu(x):
    return torch.nn.functional.gelu(x, approximate="tanh")
def _silu(x):
    return torch.nn.functional.silu(x)
def _sigmoid(x):
    return torch.sigmoid(x)
def _layernorm(x, axis=-1, eps=1e-5):
    m = x.mean(dim=axis, keepdim=True)
    v = x.var(dim=axis, keepdim=True, unbiased=False)
    return (x - m) / torch.sqrt(v + eps)
def _scatter_add(tgt, idx, src, axis=0):
    return tgt.clone().index_add_(axis, idx, src)
def _segment_sum(src, seg, n):
    out = torch.zeros((n,) + src.shape[1:], dtype=src.dtype)
    return out.index_add_(0, seg, src)
def _pad(x, pw):
    flat = tuple(v for pair in reversed(pw) for v in pair)
    return torch.nn.functional.pad(x, flat)

kernel_name = 'standalone__gqa_block_cached__sampling'

def setup_inputs():

    _w = (lambda a: (lambda t: t.to(torch.bfloat16) if t.is_floating_point() else t)(torch.as_tensor(a)))
    B, Sq, D = 32, 16, 1024
    Hq, Hkv, Sk, Dh = 32, 4, 2048, 128
    assert Hq % Hkv == 0, (Hq, Hkv)
    return {
        "x": _w((lambda *s: torch.randn(*s, dtype=torch.bfloat16) * 0.8)(B, Sq, D)),
        "k_cache": _w((lambda *s: torch.randn(*s, dtype=torch.bfloat16) * 0.8)(B, Hkv, Sk, Dh)),
        "v_cache": _w((lambda *s: torch.randn(*s, dtype=torch.bfloat16) * 0.05)(B, Hkv, Sk, Dh)),
        "wq": _w((lambda *s: torch.randn(*s, dtype=torch.bfloat16) * 0.8)(D, Hq * Dh) * (D ** -0.5)),
        "wo": _w((lambda *s: torch.randn(*s, dtype=torch.bfloat16) * 0.05)(Hq * Dh, D) * ((Hq * Dh) ** -0.5)),
    }

def reference(x, k_cache, v_cache, wq, wo):
    B, Sq, D = x.shape
    Hq, Dh = 32, 128
    Hkv = k_cache.shape[1]
    rep = Hq // Hkv
    q = (lambda x, *d: x.permute(*d))((x @ wq).reshape(B, Sq, Hq, Dh), 0, 2, 1, 3)
    k = (lambda x, n, axis: torch.repeat_interleave(x, n, dim=axis))(k_cache, rep, axis=1)
    v = (lambda x, n, axis: torch.repeat_interleave(x, n, dim=axis))(v_cache, rep, axis=1)
    scores = torch.einsum("bhqd,bhkd->bhqk", q, k) * (Dh ** -0.5)
    p = _softmax(scores, axis=-1)
    o = torch.einsum("bhqk,bhkd->bhqd", p, v)
    return (lambda x, *d: x.permute(*d))(o, 0, 2, 1, 3).reshape(B, Sq, Hq * Dh) @ wo
```

```python
import re

class Asm:
    def __init__(self):
        self.lines = []
    def __call__(self, s):
        for ln in s.split("\n"):
            ln = ln.strip()
            if ln:
                self.lines.append(ln)
    def ext(self, lst):
        for s in lst: self(s)
    def label(self, name):
        self.lines.append(name + ":")
    def text(self):
        out = []
        for ln in self.lines:
            if ln.endswith(":") or ln.startswith(".") or ln.startswith(";"):
                out.append(ln)
            else:
                out.append("    " + ln)
        return "\n".join(out) + "\n"

def vr(b, n=1, p="v"):
    return f"{p}{b}" if n == 1 else f"{p}[{b}:{b+n-1}]"
def ar(b, n=1): return vr(b, n, "a")
def sr(b, n=1): return vr(b, n, "s")

_REG = re.compile(r"^(-|abs\()?([vas])(\d+)\)?$")
_RNG = re.compile(r"^(-)?([vas])\[(\d+):(\d+)\]$")
TRANS = ("v_exp_f32", "v_log_f32", "v_rcp_f32", "v_rsq_f32", "v_sqrt_f32", "v_sin_f32", "v_cos_f32", "v_rcp_iflag_f32")

def regs_of(tok):
    tok = tok.strip()
    m = _REG.match(tok)
    if m: return {(m.group(2), int(m.group(3)))}
    m = _RNG.match(tok)
    if m: return {(m.group(2), i) for i in range(int(m.group(3)), int(m.group(4)) + 1)}
    if tok == "vcc": return {("s", "vcc")}
    if tok in ("vcc_lo", "vcc_hi"): return {("s", "vcc")}
    if tok == "exec": return {("s", "exec")}
    if tok == "m0": return {("s", "m0")}
    return set()

class Ins:
    def __init__(self, text):
        self.text = text
        t = text.split(";")[0].strip()
        parts = t.split(None, 1)
        self.op = parts[0]
        op = re.sub(r"_e(32|64)$", "", self.op)
        self.op = op
        rest = parts[1] if len(parts) > 1 else ""
        ops = [o.strip() for o in rest.split(",")] if rest else []
        mods = []
        if ops:
            lastp = ops[-1].split()
            ops[-1] = lastp[0] if lastp else ""
            mods = lastp[1:]
        self.ops = ops; self.mods = mods
        R = [regs_of(o) for o in ops]
        self.kind = "other"; self.w = set(); self.r = set(); self.srcC = set(); self.ab = set(); self.sdata = set()
        self.states = 1
        U = lambda xs: set().union(*xs) if xs else set()
        if op.startswith("v_mfma"):
            self.kind = "mfma"; self.w = R[0]; self.ab = R[1] | R[2]; self.srcC = R[3]; self.r = self.ab | self.srcC
            self.passes = 8 if "32x32" in op else 4
        elif op.startswith("v_"):
            self.kind = "valu"
            if op.startswith("v_permlane") and "swap" in op:
                self.w = R[0] | R[1]; self.r = R[0] | R[1]
            elif op.startswith("v_cmpx"):
                self.w = R[0] | {("s", "exec")}; self.r = U(R[1:])
            elif op in ("v_add_co_u32", "v_sub_co_u32", "v_addc_co_u32", "v_subb_co_u32"):
                self.w = R[0] | R[1]; self.r = U(R[2:])
            elif op in ("v_fmac_f32", "v_writelane_b32", "v_dot2c_f32_bf16"):
                self.w = R[0]; self.r = U(R)
            elif op == "v_nop":
                pass
            else:
                self.w = R[0]; self.r = U(R[1:])
            self.trans = op in TRANS
        elif op.startswith("ds_"):
            self.kind = "ds"
            if op.startswith("ds_read") or op.startswith("ds_bpermute") or op.startswith("ds_swizzle") or op.startswith("ds_permute"):
                self.w = R[0]; self.r = U(R[1:])
            else:
                self.r = U(R)
        elif op.startswith("buffer_") or op.startswith("global_"):
            self.kind = "vmem"
            if op in ("buffer_wbl2", "buffer_inv"):
                pass
            elif "lds" in mods or op.startswith("global_load_lds"):
                self.r = U(R) | {("s", "m0")}; self.lds = True
            elif "load" in op:
                self.w = R[0]; self.r = U(R[1:])
            elif "atomic" in op:
                self.r = U(R)
                if "sc0" in mods: self.w = R[0]
            else:
                self.r = U(R)
                if op.endswith("x4") or op.endswith("x3"):
                    self.sdata = R[0] if op.startswith("buffer_") else R[1]
        elif op.startswith("s_"):
            self.kind = "salu"
            if op == "s_nop":
                self.states = int(ops[0], 0) + 1
            elif op.startswith("s_cmp") or op.startswith("s_cbranch") or op in ("s_branch", "s_waitcnt", "s_barrier", "s_endpgm", "s_setprio", "s_sleep", "s_setpc_b64", "s_bitcmp1_b32", "s_bitcmp0_b32"):
                self.r = U(R)
            elif "saveexec" in op:
                self.w = R[0] | {("s", "exec")}; self.r = U(R[1:])
            else:
                self.w = R[0] if R else set(); self.r = U(R[1:])

def vg(s): return {x for x in s if x[0] in "va"}
def sg(s): return {x for x in s if x[0] == "s"}

def need(p, c):
    n = 0
    P8 = lambda a, b: (b if p.passes == 8 else a)
    if p.kind == "valu":
        if c.kind == "mfma" and vg(p.w) & c.r: n = max(n, 2)
        if c.kind == "mfma" and ("s", "exec") in p.w: n = max(n, 4)
        if c.kind == "valu":
            if p.trans and not c.trans and vg(p.w) & c.r: n = max(n, 1)
            if p.trans and c.trans and vg(p.w) & c.r: n = max(n, 1)
            if c.op.startswith("v_permlane") and vg(p.w) & c.r: n = max(n, 2)
            if c.op in ("v_readfirstlane_b32", "v_readlane_b32") and vg(p.w) & c.r: n = max(n, 1)
            if sg(p.w) & c.r: n = max(n, 4 if c.op in ("v_readlane_b32", "v_writelane_b32", "v_div_fmas_f32") else 2)
            if c.op == "v_cndmask_b32" and len(c.ops) == 3 and ("s", "vcc") in p.w: n = max(n, 2)
            if ("s", "exec") in p.w and (c.op.startswith("v_permlane") or c.op.startswith("v_read")): n = max(n, 4)
            if "dpp" in c.text or "row_" in c.text or "quad_perm" in c.text:
                if vg(p.w) & c.r: n = max(n, 2)
        if p.trans and c.kind in ("ds", "vmem") and vg(p.w) & c.r: n = max(n, 1)
        if c.kind == "vmem" and sg(p.w) & c.r: n = max(n, 5)
        if c.kind == "salu" and sg(p.w) & c.r and c.op not in ("s_cbranch_vccz", "s_cbranch_vccnz"): n = max(n, 1)
    if p.kind == "mfma":
        if c.kind == "mfma":
            if p.w & c.ab: n = max(n, P8(8, 12))
            if p.w & c.srcC and not (p.w == c.srcC and p.passes == c.passes): n = max(n, P8(6, 10))
            if p.w & c.w and not (p.w == c.srcC and p.w == c.w): n = max(n, P8(8, 12))
        elif c.kind == "valu":
            if p.w & (c.r | c.w): n = max(n, P8(8, 12))
            if p.srcC & c.w: n = max(n, P8(3, 7))
        elif c.kind in ("ds", "vmem"):
            if p.w & (c.r | c.w): n = max(n, P8(8, 12))
            if p.srcC & c.w: n = max(n, P8(3, 7))
    if p.kind == "salu":
        if ("s", "m0") in p.w and c.kind == "vmem" and getattr(c, "lds", False): n = max(n, 1)
    if p.kind == "vmem" and p.sdata:
        if c.kind == "valu" and p.sdata & c.w: n = max(n, 2)
        elif p.sdata & c.w: n = max(n, 1)
    return n

def check_hazards(lines, calls=None, verbose=True):
    ins = []; labels = {}
    for ln in lines:
        t = ln.split(";")[0].strip()
        if not t or t.startswith("."): continue
        if t.endswith(":"):
            labels[t[:-1]] = len(ins); continue
        ins.append(Ins(t))
    n = len(ins)
    preds = [[] for _ in range(n + 1)]
    call_sites = {}
    for i, x in enumerate(ins):
        if x.op == "s_call_b64":
            call_sites.setdefault(x.ops[1], []).append(i)
    for i, x in enumerate(ins):
        if x.op == "s_branch":
            preds[labels[x.ops[0]]].append(i)
        elif x.op.startswith("s_cbranch"):
            preds[labels[x.ops[0]]].append(i); preds[i + 1].append(i)
        elif x.op == "s_call_b64":
            preds[labels[x.ops[1]]].append(i)
        elif x.op == "s_setpc_b64":
            best = None
            for tgt, sites in call_sites.items():
                if labels[tgt] <= i and ins[sites[0]].ops[0] == x.ops[0] and (best is None or labels[tgt] > labels[best]): best = tgt
            assert best is not None, "setpc without call"
            for s in call_sites[best]: preds[s + 1].append(i)
        elif x.op == "s_endpgm":
            pass
        else:
            preds[i + 1].append(i)
    bad = 0
    MAXD = 14
    for i, c in enumerate(ins):
        if c.kind == "other": continue
        stack = [(p, 0) for p in preds[i]]
        seen = {}
        while stack:
            j, d = stack.pop()
            if j in seen and seen[j] <= d: continue
            seen[j] = d
            p = ins[j]
            k = need(p, c)
            if k > d:
                bad += 1
                if verbose: print(f"HAZARD: need {k} have {d}:\n   [{j}] {p.text}\n   [{i}] {c.text}")
            d2 = d + p.states
            if d2 < MAXD:
                for q in preds[j]: stack.append((q, d2))
    return bad

def interleave(main, fill, per_gap):
    out = []; k = 0
    for i, m in enumerate(main):
        out.append(m)
        for _ in range(per_gap[i]):
            if k < len(fill): out.append(fill[k]); k += 1
    out.extend(fill[k:])
    return out
```

```python
from common import *
from sync import *

R = 9
KP, VPc = 1056, 1088
KAREA = 8 * KP
SLOT = KAREA + 8 * VPc
VKA, VVA, VKB, VVB = 2, 3, 4, 5
VKO, VVO = 6, 7
VL = 8
VT = 20
VX = 28
VO = 32
VQ = 96
VS = 128
VC = 160
VP = 176
VK = 192
VV = 224
sB, sHKV, sSO, sM0, sRD, sTHR, sFLOOR, sCNT, sWK, sWV = range(44, 54)
S_LINK = 60
THR = 65536.0

def attn_setup(a, NT=32):
    a(f"s_lshr_b32 s{sHKV}, s{S_XCD}, 1")
    a(f"s_and_b32 s{sB}, s{S_XCD}, 1")
    a(f"s_lshl_b32 s62, s{S_P}, 1"); a(f"s_add_u32 s{sB}, s{sB}, s62")
    a(f"s_lshl_b32 s62, s{sB}, 2"); a(f"s_add_u32 s62, s62, s{sHKV}"); a("s_lshl_b32 s62, s62, 1")
    a(f"s_add_u32 s62, s62, s{S_ROLE}"); a(f"s_lshl_b32 s62, s62, 18")
    for s in (S_K, S_V):
        a(f"s_add_u32 s{s}, s{s}, s62"); a(f"s_addc_u32 s{s+1}, s{s+1}, 0"); a(f"s_mov_b32 s{s+2}, {NT*8192}")
    a(f"s_mul_i32 s{sWK}, s{S_WAVE}, {2*KP}")
    a(f"s_mul_i32 s{sWV}, s{S_WAVE}, {2*VPc}"); a(f"s_add_u32 s{sWV}, s{sWV}, {KAREA}")
    a(f"v_lshrrev_b32 v{VX}, 4, v1")
    a(f"v_and_b32 v{VX+1}, 15, v1")
    a(f"v_lshlrev_b32 v{VX+2}, 4, v{VX+1}")
    a(f"v_lshl_add_u32 v{VX+2}, v{VX}, 11, v{VX+2}")
    a(f"s_lshl_b32 s62, s{S_WAVE}, 9")
    a(f"v_add_u32 v{VVO}, s62, v{VX+2}")
    a(f"v_and_b32 v{VX+2}, 16, v1")
    a(f"v_xor_b32 v{VKO}, v{VVO}, v{VX+2}")

def attn_addr(a):
    a(f"v_and_b32 v{VX}, 7, v1"); a(f"v_mul_u32_u24 v{VX}, {KP}, v{VX}")
    a(f"v_bfe_u32 v{VX+1}, v1, 3, 2"); a(f"v_lshl_add_u32 v{VX}, v{VX+1}, 8, v{VX}")
    a(f"v_lshrrev_b32 v{VX+2}, 5, v1"); a(f"v_xor_b32 v{VX+1}, v{VX+1}, v{VX+2}"); a(f"v_and_b32 v{VX+1}, 1, v{VX+1}")
    a(f"v_lshl_add_u32 v{VKB}, v{VX+1}, 4, v{VX}")
    a(f"v_bfe_u32 v{VX}, v1, 2, 2")
    a(f"v_lshl_add_u32 v{VX}, v{VX+2}, 2, v{VX}"); a(f"v_mul_u32_u24 v{VX}, {VPc}, v{VX}")
    a(f"v_bfe_u32 v{VX+3}, v1, 4, 1"); a(f"v_lshl_add_u32 v{VX}, v{VX+3}, 5, v{VX}")
    a(f"v_and_b32 v{VX+3}, 1, v1"); a(f"v_lshl_add_u32 v{VX}, v{VX+3}, 4, v{VX}")
    a(f"v_bfe_u32 v{VX+3}, v1, 1, 1"); a(f"v_lshl_add_u32 v{VX}, v{VX+3}, 3, v{VX}")
    a(f"v_add_u32 v{VVB}, {KAREA}, v{VX}")

def ldK(so, i): return f"buffer_load_dwordx4 v{VKO}, s[{S_K}:{S_K+3}], {so} offen offset:{256*i} nt lds"
def ldV(so, i): return f"buffer_load_dwordx4 v{VVO}, s[{S_V}:{S_V+3}], {so} offen offset:{256*i} nt lds"

def fill_first(a):
    a(f"s_mov_b32 m0, s{sWK}"); a("s_mov_b32 s62, 8192"); a(ldK("0", 0))
    a(f"s_add_u32 m0, s{sWK}, {KP-256}"); a("s_nop 0"); a(ldK("0", 1))
    a(f"s_add_u32 m0, s{sWK}, {KAREA}"); a("s_nop 0"); a(ldK("s62", 0))
    a(f"s_add_u32 m0, s{sWK}, {KAREA+KP-256}"); a("s_nop 0"); a(ldK("s62", 1))
    a(f"s_add_u32 s{S_K}, s{S_K}, 16384"); a(f"s_addc_u32 s{S_K+1}, s{S_K+1}, 0"); a(f"s_sub_u32 s{S_K+2}, s{S_K+2}, 16384")
    a(f"s_mov_b32 s{sSO}, 0")

def fill_static(a, pos):
    b = pos * SLOT
    a(f"s_add_u32 m0, s{sWK}, {b}"); a("s_nop 0"); a(ldK(f"s{sSO}", 0))
    a(f"s_add_u32 m0, s{sWK}, {b+KP-256}"); a("s_nop 0"); a(ldK(f"s{sSO}", 1))
    a(f"s_add_u32 m0, s{sWV}, {b}"); a("s_nop 0"); a(ldV(f"s{sSO}", 0))
    a(f"s_add_u32 m0, s{sWV}, {b+VPc-256}"); a("s_nop 0"); a(ldV(f"s{sSO}", 1))
    a(f"s_add_u32 s{sSO}, s{sSO}, 8192")

def kreads(off=0, va=VKA):
    return [f"ds_read_b128 {vr(VK+4*j,4)}, v{va} offset:{off+32*j}" for j in range(8)]
def vreads():
    o = []
    for ts in range(2):
        for db in range(4):
            for e2 in range(2):
                o.append(f"ds_read_b64_tr_b16 {vr(VV+(db*2+ts)*4+2*e2,2)}, v{VVA} offset:{(2*ts+e2)*256+db*64}")
    return o
def qk(buf):
    d = VS + 16 * buf
    return [f"v_mfma_f32_32x32x16_bf16 {vr(d,16)}, {vr(VK+4*j,4)}, {vr(VQ+4*j,4)}, {vr(VC,16) if j == 0 else vr(d,16)}" for j in range(8)]
def pv(buf):
    o = []
    for ts in range(2):
        for db in range(4):
            d = VO + 16 * db
            o.append(f"v_mfma_f32_32x32x16_bf16 {vr(d,16)}, {vr(VV+(db*2+ts)*4,4)}, {vr(VP+8*buf+4*ts,4)}, {vr(d,16)}")
    return o
def soft_groups(buf, lo, hi):
    s = VS + 16 * buf; p = VP + 8 * buf; acc = VL + buf
    G = []
    for k in range(lo, hi + 1):
        g = []
        if k < hi: g.append(f"v_exp_f32 v{VT+(k&7)}, v{s+k}")
        if k > lo:
            e = k - 1
            src = VL + (buf ^ 1) if e == 0 else acc
            g.append(f"v_add_f32 v{acc}, v{src}, v{VT+(e&7)}")
            if e & 1: g.append(f"v_cvt_pk_bf16_f32 v{p+e//2}, v{VT+((e-1)&7)}, v{VT+(e&7)}")
        G.append(g)
    return G

def issue_dyn():
    so = f"s{sSO}"
    return [(f"s_add_u32 m0, s{sM0}, s{sWK}", ldK(so, 0)),
            (f"s_add_u32 m0, m0, {KP-256}", ldK(so, 1)),
            (f"s_add_u32 m0, s{sM0}, s{sWV}", ldV(so, 0)),
            (f"s_add_u32 m0, m0, {VPc-256}", ldV(so, 1))]

def rare(a, L, cur):
    nxt = cur ^ 1
    s = VS + 16 * cur; sn = VS + 16 * nxt
    a.label(f"{L}_rare{cur}")
    a(f"v_max3_f32 v{VX}, v{s}, v{s+1}, v{s+2}")
    for i in range(3, 15, 2): a(f"v_max3_f32 v{VX}, v{VX}, v{s+i}, v{s+i+1}")
    a(f"v_max_f32 v{VX}, v{VX}, v{s+15}")
    a(f"v_mov_b32 v{VX+1}, v{VX}")
    a("s_nop 1")
    a(f"v_permlane32_swap_b32 v{VX}, v{VX+1}")
    a(f"v_max3_f32 v{VX}, v{VX}, v{VX+1}, s{sFLOOR}")
    a(f"v_max_f32 v{VX+1}, 0, v{VX}")
    a(f"v_exp_f32 v{VX+1}, -v{VX+1}")
    for i in range(16): a(f"v_sub_f32 v{s+i}, v{s+i}, v{VX}")
    for i in range(64): a(f"v_mul_f32 v{VO+i}, v{VO+i}, v{VX+1}")
    a(f"v_mul_f32 v{VL+nxt}, v{VL+nxt}, v{VX+1}")
    for i in range(16): a(f"v_sub_f32 v{VC+i}, v{VC+i}, v{VX}")
    for i in range(16): a(f"v_sub_f32 v{sn+i}, v{sn+i}, v{VX}")
    G = soft_groups(cur, 0, 16)
    for g in G[:-1]: a.ext(g)
    a(f"s_mov_b32 s{sTHR}, {f2u(THR):#x}")
    a.ext(G[-1])
    a(f"s_mov_b32 s{sFLOOR}, 0")
    a(f"s_setpc_b64 s[{S_LINK}:{S_LINK+1}]")

NB = 7

def iteration(a, L, cur, tag, do_qk=True, do_kread=True, do_next=True, vm=None, nb=None, loop=None):
    nb = NB if nb is None else nb
    nxt = cur ^ 1
    a(f"s_waitcnt vmcnt({4*(R-2) if vm is None else vm}) lgkmcnt(0)")
    a("s_barrier")
    Gall = soft_groups(cur, 0, 16)
    GA = Gall[nb:]
    vrd = vreads(); iss = issue_dyn()
    gaps = [[] for _ in range(8)]
    k = 0
    for gi, n in enumerate((3, 3, 3, 3, 2, 2, 0, 0)):
        gaps[gi] += vrd[k:k + n]; k += n
    ng = len(GA)
    for i, g in enumerate(GA):
        gaps[min(7, (i * 8) // ng)] += g
    m = qk(nxt) if do_qk else [None] * 8
    for gi in range(8):
        if m[gi]: a(m[gi])
        a.ext(gaps[gi])
    a(f"v_cmp_lt_f32 vcc, s{sTHR}, v{VL+cur}")
    a(f"s_cbranch_vccz {L}_ok{tag}")
    a(f"s_call_b64 s[{S_LINK}:{S_LINK+1}], {L}_rare{cur}")
    a.label(f"{L}_ok{tag}")
    a("s_waitcnt lgkmcnt(0)")
    krd = kreads() if do_kread else []
    GB = soft_groups(nxt, 0, 16)[:nb] if do_next else []
    gaps = [[] for _ in range(8)]
    gaps[0] += krd[0:4] + [iss[0][0]]
    gaps[1] += [iss[0][1]] + krd[4:8] + [iss[1][0]]
    gaps[2] += [iss[1][1]]
    gaps[3] += [iss[2][0]]
    gaps[4] += [iss[2][1], iss[3][0]]
    gaps[5] += [iss[3][1], f"s_mov_b32 s{sM0}, s{sRD}", f"s_add_u32 s{sRD}, s{sRD}, {SLOT}"]
    gaps[6] += [f"s_cmp_eq_u32 s{sRD}, {R*SLOT}", f"s_cselect_b32 s{sRD}, 0, s{sRD}", f"s_add_u32 s{sSO}, s{sSO}, 8192"]
    gaps[7] += [f"v_add_u32 v{VVA}, s{sRD}, v{VVB}", f"v_add_u32 v{VKA}, s{sRD}, v{VKB}"]
    if loop: gaps[7] += loop
    ng = len(GB)
    for i, g in enumerate(GB):
        gi = min(7, 2 + (i * 6) // ng)
        gaps[gi] = g + gaps[gi] if False else gaps[gi] + g
    m = pv(cur)
    if not do_kread:
        gaps[1] += ["s_nop 3"]
    for gi in range(8):
        a(m[gi]); a.ext(gaps[gi])

def attn_main(a, L, NT=32, st=False, vm0=0):
    for i in range(64): a(f"v_mov_b32 v{VO+i}, 0")
    for i in range(16): a(f"v_mov_b32 v{VC+i}, 0")
    a(f"v_mov_b32 v{VL}, 0"); a(f"v_mov_b32 v{VL+1}, 0")
    for i in range(8): a(f"v_mov_b32 v{VT+i}, 0")
    a(f"s_mov_b32 s{sTHR}, {f2u(-1.0):#x}")
    a(f"s_mov_b32 s{sFLOOR}, 0xff800000")
    a(f"s_mov_b32 s{sM0}, 0"); a(f"s_mov_b32 s{sRD}, {SLOT}")
    a(f"v_add_u32 v{VVA}, {SLOT}, v{VVB}"); a(f"v_add_u32 v{VKA}, {SLOT}, v{VKB}")
    a(f"s_waitcnt vmcnt({vm0})")
    a("s_barrier")
    stamp(a, 2, st)
    a.ext(kreads(0, VKB))
    q0 = qk(0); k1 = kreads(KAREA, VKB)
    for j in range(8):
        a(f"s_waitcnt lgkmcnt({7})" if True else "")
        a(q0[j]); a(k1[j])
    a(f"s_mov_b32 s{sCNT}, 0")
    a("s_nop 7")
    a.label(f"{L}_loop")
    iteration(a, L, 0, "a")
    iteration(a, L, 1, "b", loop=[f"s_add_u32 s{sCNT}, s{sCNT}, 2", f"s_cmp_lt_u32 s{sCNT}, {NT-2}"])
    a(f"s_cbranch_scc1 {L}_loop")
    iteration(a, L, 0, "c", do_kread=False)
    iteration(a, L, 1, "d", do_qk=False, do_kread=False, do_next=False)
    a(f"v_mov_b32 v{VL}, v{VL+1}")
    a(f"s_branch {L}_end")
    rare(a, L, 0); rare(a, L, 1)
    a.label(f"{L}_end")

def load_q(a, fl=""):
    a(f"v_bfe_u32 v{VX}, v1, 4, 1"); a(f"v_lshlrev_b32 v{VX}, 12, v{VX}")
    a(f"v_lshrrev_b32 v{VX+1}, 5, v1"); a(f"v_lshl_add_u32 v{VX}, v{VX+1}, 8, v{VX}")
    a(f"v_and_b32 v{VX+1}, 15, v1"); a(f"v_lshl_add_u32 v{VX}, v{VX+1}, 4, v{VX}")
    a(f"s_lshl_b32 s62, s{sB}, 17"); a(f"s_lshl_b32 s63, s{sHKV}, 15"); a("s_add_u32 s62, s62, s63")
    a(f"s_lshl_b32 s63, s{S_WAVE}, 13"); a("s_add_u32 s62, s62, s63")
    if WS_Q: a(f"s_add_u32 s62, s62, {WS_Q}")
    for j in range(8):
        a(f"buffer_load_dwordx4 {vr(VQ+4*j,4)}, v{VX}, s[{S_WS}:{S_WS+3}], s62 offen offset:{j*512} {fl}")

def attn_epilogue(a, L, st=False):
    sPAIR, sA, sBq = 66, 67, 68
    a(f"v_mov_b32 v{VX}, v{VL}")
    a(f"s_lshl_b32 s{sPAIR}, s{sB}, 2"); a(f"s_add_u32 s{sPAIR}, s{sPAIR}, s{sHKV}")
    a(f"s_lshl_b32 s{sPAIR}, s{sPAIR}, 2"); a(f"s_add_u32 s{sPAIR}, s{sPAIR}, s{S_WAVE}")
    a(f"v_permlane32_swap_b32 v{VX}, v{VL}")
    a(f"v_lshlrev_b32 v{VX+2}, 4, v1")
    a(f"v_lshlrev_b32 v{VX+3}, 3, v1")
    a(f"v_add_f32 v{VL}, v{VL}, v{VX}")
    a(f"s_lshl_b32 s{sA}, s{sPAIR}, 13"); a(f"s_add_u32 s{sA}, s{sA}, {WS_SP}")
    a(f"s_lshl_b32 s{sBq}, s{sPAIR}, 9"); a(f"s_add_u32 s{sBq}, s{sBq}, {WS_SML}")
    a(f"s_lshl_b32 s65, s{sPAIR}, 3"); a(f"s_add_u32 s65, s65, {FL_S}")
    a(f"s_cmp_lg_u32 s{S_ROLE}, 0")
    a(f"s_cbranch_scc1 {L}_P")
    a(f"v_rcp_f32 v{VX}, v{VL}")
    a(f"v_mov_b32 v{VT}, v{VC}"); a(f"v_mov_b32 v{VT+1}, v{VL}")
    a(f"buffer_store_dwordx2 {vr(VT,2)}, v{VX+3}, s[{S_WS}:{S_WS+3}], s{sBq} offen sc1")
    a(f"s_add_u32 s69, s{sA}, 4096")
    for g in range(8):
        o = VO + 8 * g; t = VK + 4 * g
        for i in range(8): a(f"v_mul_f32 v{o+i}, v{o+i}, v{VX}")
        for i in range(4): a(f"v_cvt_pk_bf16_f32 v{t+i}, v{o+2*i}, v{o+2*i+1}")
        a(f"buffer_store_dwordx4 {vr(t,4)}, v{VX+2}, s[{S_WS}:{S_WS+3}], s{sA if g < 4 else 69} offen offset:{(g&3)*1024} sc1")
    signal(a, 65, VT + 2)
    a(f"s_branch {L}_E")
    a.label(f"{L}_P")
    wait_flags(a, f"{L}_sp", 65, 1, VT + 2)
    stamp(a, 4, st)
    a(f"buffer_load_dwordx2 {vr(VT,2)}, v{VX+3}, s[{S_WS}:{S_WS+3}], s{sBq} offen sc1")
    a(f"s_add_u32 s69, s{sA}, 4096")
    for g in range(8):
        a(f"buffer_load_dwordx4 {vr(VK+4*g,4)}, v{VX+2}, s[{S_WS}:{S_WS+3}], s{sA if g < 4 else 69} offen offset:{(g&3)*1024} sc1")
    a(f"v_bfe_u32 v{VX}, v1, 4, 1"); a(f"v_lshlrev_b32 v{VX}, 13, v{VX}")
    a(f"v_lshrrev_b32 v{VX+1}, 5, v1"); a(f"v_lshl_add_u32 v{VX}, v{VX+1}, 9, v{VX}")
    a(f"v_and_b32 v{VX+1}, 15, v1"); a(f"v_lshl_add_u32 v{VX}, v{VX+1}, 4, v{VX}")
    a(f"s_lshr_b32 s66, s{sB}, 1"); a("s_lshl_b32 s66, s66, 18"); a(f"s_lshl_b32 s63, s{sHKV}, 16"); a("s_add_u32 s66, s66, s63")
    a(f"s_lshl_b32 s63, s{S_WAVE}, 14"); a("s_add_u32 s66, s66, s63"); a(f"s_add_u32 s66, s66, {WS_O}")
    a(f"s_and_b32 s63, s{sB}, 1"); a("s_lshl_b32 s63, s63, 8"); a("s_add_u32 s66, s66, s63")
    a("s_add_u32 s64, s66, 4096")
    a(f"s_lshl_b32 s65, s{sHKV}, 2"); a(f"s_add_u32 s65, s65, s{S_WAVE}"); a("s_lshl_b32 s65, s65, 5")
    a(f"s_add_u32 s65, s65, s{sB}"); a("s_lshl_b32 s65, s65, 3"); a(f"s_add_u32 s65, s65, {FL_O}")
    a("s_waitcnt vmcnt(8)")
    a(f"v_min_f32 v{VT+2}, v{VC}, v{VT}")
    a(f"v_sub_f32 v{VT+3}, v{VT+2}, v{VC}")
    a(f"v_sub_f32 v{VT+4}, v{VT+2}, v{VT}")
    a(f"v_exp_f32 v{VT+3}, v{VT+3}")
    a(f"v_exp_f32 v{VT+4}, v{VT+4}")
    a("s_nop 0")
    a(f"v_mul_f32 v{VT+4}, v{VT+4}, v{VT+1}")
    a(f"v_fma_f32 v{VT+5}, v{VL}, v{VT+3}, v{VT+4}")
    a(f"v_rcp_f32 v{VT+5}, v{VT+5}")
    a("s_nop 0")
    a(f"v_mul_f32 v{VT+3}, v{VT+3}, v{VT+5}")
    a(f"v_mul_f32 v{VT+4}, v{VT+4}, v{VT+5}")
    for i in range(64): a(f"v_mul_f32 v{VO+i}, v{VO+i}, v{VT+3}")
    for g in range(8):
        o = VO + 8 * g; t = VK + 4 * g; u = VV + 4 * g
        a(f"s_waitcnt vmcnt({7})")
        for i in range(4):
            a(f"v_lshlrev_b32 v{VT+6}, 16, v{t+i}")
            a(f"v_and_b32 v{VT+7}, 0xffff0000, v{t+i}")
            a(f"v_fmac_f32 v{o+2*i}, v{VT+6}, v{VT+4}")
            a(f"v_fmac_f32 v{o+2*i+1}, v{VT+7}, v{VT+4}")
        for i in range(4): a(f"v_cvt_pk_bf16_f32 v{u+i}, v{o+2*i}, v{o+2*i+1}")
        a(f"buffer_store_dwordx4 {vr(u,4)}, v{VX}, s[{S_WS}:{S_WS+3}], s{66 if g < 4 else 64} offen offset:{(g&3)*1024} sc1")
    signal(a, 65, VT + 2)
    a.label(f"{L}_E")
```

```python
from asmlib import *
NAME = "standalone__gqa_block_cached__sampling"

WS_Q     = 0
WS_O     = 4 << 20
WS_SP    = 8 << 20
WS_SML   = 12 << 20
WS_PO    = 13 << 20
WS_FLAG  = 22 << 20
WS_STAMP = 24 << 20
WS_BYTES = 268435456

S_X, S_K, S_V, S_WQ, S_WO, S_OUT, S_WS = 4, 8, 12, 16, 20, 24, 28
S_DBG = 32
S_WAVE, S_XCD, S_J, S_ROLE, S_P = 34, 35, 36, 37, 38
S_NONCE = 40
S_T = 44
S_STAMP = 70

CSCALE = 1.4426950408889634 / (128 ** 0.5)
import struct
def f2u(x): return struct.unpack("<I", struct.pack("<f", x))[0]

def header(a, launches):
    for l in launches: a(l)
    a('.amdgcn_target "amdgcn-amd-amdhsa--gfx950"')
    a(".text")

def kernel_begin(a, name):
    a(f".globl {name}"); a(".p2align 8"); a(f".type {name},@function"); a.label(name)

def descriptor(a, name, vgpr=512, accum=256, sgpr=102):
    a('.section .rodata,"a"'); a(".p2align 6")
    a(f".amdhsa_kernel {name}")
    a(f".amdhsa_next_free_vgpr {vgpr}"); a(f".amdhsa_next_free_sgpr {sgpr}"); a(f".amdhsa_accum_offset {accum}")
    a(".amdhsa_group_segment_fixed_size 0"); a(".amdhsa_kernarg_size 64"); a(".amdhsa_user_sgpr_count 2")
    a(".amdhsa_user_sgpr_kernarg_segment_ptr 1"); a(".amdhsa_system_sgpr_workgroup_id_x 1")
    a(".end_amdhsa_kernel")
    a(".text")

def prologue(a, done_label, stamps=False, under=None):
    if stamps: a(f"s_memrealtime s[{S_STAMP}:{S_STAMP+1}]")
    a("s_cmp_ge_u32 s2, 256")
    a(f"s_cbranch_scc1 {done_label}")
    a("s_load_dwordx16 s[44:59], s[0:1], 0")
    a("v_lshrrev_b32 v2, 6, v0")
    a("v_and_b32 v1, 63, v0")
    a(f"v_readfirstlane_b32 s{S_WAVE}, v2")
    a(f"s_and_b32 s{S_XCD}, s2, 7")
    a(f"s_lshr_b32 s{S_J}, s2, 3")
    a(f"s_and_b32 s{S_ROLE}, s{S_J}, 1")
    a(f"s_lshr_b32 s{S_P}, s{S_J}, 1")
    sizes = {S_X: 1 << 20, S_K: 1 << 26, S_V: 1 << 26, S_WQ: 1 << 23, S_WO: 1 << 23, S_OUT: 1 << 20, S_WS: WS_BYTES}
    for d, n in sizes.items():
        a(f"s_mov_b32 s{d+2}, {n:#x}"); a(f"s_mov_b32 s{d+3}, 0x20000")
    if under: under(a)
    a("s_waitcnt lgkmcnt(0)")
    src = {S_X: 44, S_K: 46, S_V: 48, S_WQ: 50, S_WO: 52, S_OUT: 54, S_WS: 58}
    for d, s in src.items():
        a(f"s_mov_b32 s{d}, s{s}"); a(f"s_and_b32 s{d+1}, s{s+1}, 0xffff")
    a(f"s_mov_b64 s[{S_DBG}:{S_DBG+1}], s[56:57]")

def stamp(a, i, on=True):
    if on: a(f"s_memrealtime s[{S_STAMP+2*i}:{S_STAMP+2*i+1}]")

def write_stamps(a, n, lab, wave=0):
    a("s_waitcnt lgkmcnt(0)")
    a(f"s_cmp_lg_u32 s{S_WAVE}, {wave}")
    a(f"s_cbranch_scc1 {lab}")
    a(f"s_mul_i32 s44, s2, {n*8}")
    a(f"s_add_u32 s44, s44, {WS_STAMP}")
    a("v_mov_b32 v2, 0")
    a("s_mov_b64 exec, 1")
    for i in range(n):
        a(f"v_mov_b32 v4, s{S_STAMP+2*i}"); a(f"v_mov_b32 v5, s{S_STAMP+2*i+1}")
        a(f"buffer_store_dwordx2 v[4:5], v2, s[{S_WS}:{S_WS+3}], s44 offen offset:{8*i}")
    a("s_mov_b64 exec, -1")
    a.label(lab)
```

```python
from common import *
from sync import *
VWO, VWA, VL16 = 10, 14, 15
sWOS, sN0, sMB, sH3, sTILE = 54, 55, 56, 57, 58

def oproj_setup(a):
    X = 28
    a(f"s_lshr_b32 s{sH3}, s{S_XCD}, 1")
    a(f"s_and_b32 s{sMB}, s{S_J}, 7")
    a(f"s_and_b32 s62, s{S_XCD}, 1")
    a(f"s_lshl_b32 s{sTILE}, s62, 5"); a(f"s_add_u32 s{sTILE}, s{sTILE}, s{S_J}")
    a(f"s_lshr_b32 s{sN0}, s{sTILE}, 3"); a(f"s_lshl_b32 s{sN0}, s{sN0}, 7")
    a(f"s_lshl_b32 s{sWOS}, s{sH3}, 21"); a(f"s_lshl_b32 s62, s{S_WAVE}, 15"); a(f"s_add_u32 s{sWOS}, s{sWOS}, s62")
    a(f"s_lshl_b32 s62, s{sN0}, 1"); a(f"s_add_u32 s{sWOS}, s{sWOS}, s62")
    a(f"v_lshrrev_b32 v{X}, 4, v1"); a(f"v_and_b32 v{X+1}, 15, v1")
    a(f"v_lshlrev_b32 v{X+2}, 2, v{X}"); a(f"v_xor_b32 v{X+1}, v{X+1}, v{X+2}"); a(f"v_lshlrev_b32 v{X+1}, 4, v{X+1}")
    a(f"v_lshl_add_u32 v{VWO}, v{X}, 11, v{X+1}")
    for i in range(1, 4): a(f"v_add_u32 v{VWO+i}, {i*(8192-1024)}, v{VWO}")
    a(f"v_bfe_u32 v{X}, v1, 2, 2"); a(f"v_lshrrev_b32 v{X+1}, 5, v1")
    a(f"v_lshl_add_u32 v{X+1}, v{X+1}, 3, v{X}"); a(f"v_lshlrev_b32 v{X+1}, 8, v{X+1}")
    a(f"v_xor_b32 v{X}, s{S_WAVE}, v{X}"); a(f"v_lshl_add_u32 v{X+1}, v{X}, 6, v{X+1}")
    a(f"v_bfe_u32 v{X}, v1, 4, 1"); a(f"v_lshl_add_u32 v{X+1}, v{X}, 5, v{X+1}")
    a(f"v_and_b32 v{X}, 1, v1"); a(f"v_lshl_add_u32 v{X+1}, v{X}, 4, v{X+1}")
    a(f"v_bfe_u32 v{X}, v1, 1, 1"); a(f"v_lshl_add_u32 v{VWA}, v{X}, 3, v{X+1}")
    a(f"v_lshlrev_b32 v{VL16}, 4, v1")

def wo_issue(ldsbase_expr, fl=""):
    o = list(ldsbase_expr)
    o.append("s_nop 0")
    for i in range(4):
        o.append(f"buffer_load_dwordx4 v{VWO+i}, s[{S_WO}:{S_WO+3}], s{sWOS} offen offset:{i*1024} {fl} lds")
    o.append(f"s_add_u32 s{sWOS}, s{sWOS}, {64*2048}")
    return o

def wo_reads(u, va, off):
    o = []
    for j in range(4):
        for e2 in range(2):
            o.append(f"ds_read_b64_tr_b16 {ar(16*u+4*j+2*e2,2)}, v{va} offset:{off+(16*j+4*e2)*256}")
    return o

def oproj_main(a, L, st=False, waitflags=True, stbase=3):
    ACC = 32; FB = 64; T = 20
    if waitflags:
        a(f"s_lshl_b32 s65, s{sH3}, 2"); a(f"s_add_u32 s65, s65, s{S_WAVE}"); a("s_lshl_b32 s65, s65, 5")
        a(f"s_lshl_b32 s64, s{sMB}, 2"); a("s_add_u32 s65, s65, s64"); a("s_lshl_b32 s65, s65, 3"); a(f"s_add_u32 s65, s65, {FL_O}")
        wait_flags(a, f"{L}_o", 65, 4, T)
    stamp(a, stbase, st)
    a(f"s_lshl_b32 s64, s{sMB}, 19"); a(f"s_lshl_b32 s65, s{sH3}, 16"); a("s_add_u32 s64, s64, s65")
    a(f"s_lshl_b32 s65, s{S_WAVE}, 14"); a("s_add_u32 s64, s64, s65"); a(f"s_add_u32 s64, s64, {WS_O}")
    for mb in range(2):
        for q in range(4):
            a(f"s_add_u32 m0, s65, {mb*65536+q*4096}")
            a(f"s_add_u32 s66, s64, {mb*262144+q*4096}")
            for i in range(4):
                a(f"buffer_load_dwordx4 v{VL16}, s[{S_WS}:{S_WS+3}], s66 offen offset:{i*1024} sc1 lds")
    a(f"v_add_u32 v16, 0x10000, v{VL16}")
    NBUF = 8
    for c in range(4):
        mb, hp = c >> 1, c & 1
        a(f"s_waitcnt vmcnt({24-8*c})"); a("s_barrier")
        items = [(2 * w + hp) * 8 + j for w in range(4) for j in range(8)]
        va = VL16 if mb == 0 else 16
        rd = lambda i: f"ds_read_b128 {vr(FB+4*(i%NBUF),4)}, v{va} offset:{items[i]*1024}"
        for i in range(NBUF - 1): a(rd(i))
        d = ACC + 16 * mb
        for i in range(32):
            if i + NBUF - 1 < 32:
                a(rd(i + NBUF - 1)); a(f"s_waitcnt lgkmcnt({NBUF-1})")
            else:
                a(f"s_waitcnt lgkmcnt({31-i})")
            cin = "0" if (hp == 0 and i == 0) else vr(d, 16)
            a(f"v_mfma_f32_32x32x16_bf16 {vr(d,16)}, {ar(4*items[i],4)}, {vr(FB+4*(i%NBUF),4)}, {cin}")
    stamp(a, stbase + 1, st)
    a(f"s_lshl_b32 s64, s{sTILE}, 2"); a(f"s_add_u32 s65, s64, s{sH3}"); a("s_lshl_b32 s65, s65, 2"); a(f"s_add_u32 s65, s65, s{S_WAVE}")
    a("s_lshl_b32 s65, s65, 13"); a(f"s_add_u32 s65, s65, {WS_PO}"); a("s_add_u32 s66, s65, 4096")
    a(f"s_add_u32 s67, s64, s{S_WAVE}"); a("s_lshl_b32 s67, s67, 5"); a(f"s_add_u32 s67, s67, {FL_PO}")
    a(f"s_lshl_b32 s68, s{sH3}, 3"); a("s_add_u32 s68, s68, s67")
    for i in range(4):
        a(f"buffer_store_dwordx4 {vr(ACC+4*i,4)}, v{VL16}, s[{S_WS}:{S_WS+3}], s65 offen offset:{i*1024} sc1")
    a("s_nop 4")
    for i in range(4):
        a(f"buffer_store_dwordx4 {vr(ACC+16+4*i,4)}, v{VL16}, s[{S_WS}:{S_WS+3}], s66 offen offset:{i*1024} sc1")
    signal(a, 68, T)
    stamp(a, stbase + 2, st)
    wait_flags(a, f"{L}_p", 67, 4, T)
    stamp(a, stbase + 3, st)
    a(f"s_lshl_b32 s65, s{sTILE}, 4"); a(f"s_add_u32 s65, s65, s{S_WAVE}"); a("s_lshl_b32 s65, s65, 13")
    a(f"s_lshl_b32 s66, s{sH3}, 11"); a("s_add_u32 s65, s65, s66"); a(f"s_add_u32 s65, s65, {WS_PO}")
    for s in range(4):
        for i in range(2):
            a(f"buffer_load_dwordx4 {vr(FB+8*s+4*i,4)}, v{VL16}, s[{S_WS}:{S_WS+3}], s65 offen offset:{i*1024} sc1")
        if s < 3: a("s_add_u32 s65, s65, 32768")
    a("v_and_b32 v16, 31, v1"); a("v_lshlrev_b32 v16, 11, v16")
    a("v_lshrrev_b32 v17, 5, v1"); a("v_lshl_add_u32 v16, v17, 4, v16")
    a(f"s_lshl_b32 s64, s{sMB}, 17"); a(f"s_lshr_b32 s65, s{sH3}, 1"); a("s_lshl_b32 s65, s65, 16"); a("s_add_u32 s64, s64, s65")
    a(f"s_lshl_b32 s65, s{sN0}, 1"); a("s_add_u32 s64, s64, s65")
    a(f"s_lshl_b32 s65, s{S_WAVE}, 6"); a("s_add_u32 s64, s64, s65")
    a(f"s_and_b32 s65, s{sH3}, 1"); a("s_lshl_b32 s65, s65, 5"); a("s_add_u32 s64, s64, s65")
    a("s_waitcnt vmcnt(4)")
    for i in range(8): a(f"v_add_f32 v{FB+i}, v{FB+i}, v{FB+8+i}")
    a("s_waitcnt vmcnt(0)")
    for i in range(8): a(f"v_add_f32 v{FB+16+i}, v{FB+16+i}, v{FB+24+i}")
    for i in range(8): a(f"v_add_f32 v{FB+i}, v{FB+i}, v{FB+16+i}")
    for i in range(4): a(f"v_cvt_pk_bf16_f32 v{ACC+i}, v{FB+2*i}, v{FB+2*i+1}")
    a(f"buffer_store_dwordx4 {vr(ACC,4)}, v16, s[{S_OUT}:{S_OUT+3}], s64 offen")
```

```python
from common import *

def qproj(a, L, stq="", xfl="", wfl="nt", st=False, unroll=False, nomfma=False, noread=False):
    sMI, sNI, sHEAD, sKC, sXO, sWO_, sXB, sWB, sM0X, sCNT, sWN, sWM = range(44, 56)
    a(f"s_and_b32 s{sMI}, s{S_P}, 3")
    a(f"s_lshr_b32 s{sNI}, s{S_P}, 2")
    a(f"s_lshl_b32 s{sHEAD}, s{S_XCD}, 2")
    a(f"s_add_u32 s{sHEAD}, s{sHEAD}, s{sNI}")
    a(f"s_add_u32 s{sKC}, s{sMI}, s{sNI}")
    a(f"s_and_b32 s{sKC}, s{sKC}, 3")
    a(f"s_lshl_b32 s{sKC}, s{sKC}, 2")
    a(f"s_lshl_b32 s{sXB}, s{sMI}, 2"); a(f"s_add_u32 s{sXB}, s{sXB}, s{S_WAVE}"); a(f"s_lshl_b32 s{sXB}, s{sXB}, 16")
    a(f"s_lshl_b32 s{sWB}, s{S_WAVE}, 17"); a(f"s_lshl_b32 s56, s{sHEAD}, 8"); a(f"s_add_u32 s{sWB}, s{sWB}, s56")
    a(f"s_lshl_b32 s{sM0X}, s{S_WAVE}, 12")
    a(f"s_and_b32 s{sWN}, s{S_WAVE}, 1"); a(f"s_lshr_b32 s{sWM}, s{S_WAVE}, 1")
    VX, VW = 4, 8
    a("v_lshrrev_b32 v2, 4, v1")
    a("v_and_b32 v3, 7, v1")
    a("v_xor_b32 v3, v3, v2")
    a("v_lshlrev_b32 v3, 4, v3")
    a("v_lshrrev_b32 v12, 3, v1")
    a("v_lshl_add_u32 v3, v12, 11, v3")
    for i in range(4):
        if i & 1:
            a(f"v_xor_b32 v{VX+i}, 64, v3")
            a(f"v_add_u32 v{VX+i}, {i*(16384-1024)}, v{VX+i}")
        else:
            a(f"v_add_u32 v{VX+i}, {i*(16384-1024)}, v3")
    a("v_and_b32 v3, 15, v1")
    a("v_lshlrev_b32 v12, 2, v2")
    a("v_xor_b32 v3, v3, v12")
    a("v_lshlrev_b32 v3, 4, v3")
    a("v_lshl_add_u32 v3, v2, 13, v3")
    for i in range(4):
        a(f"v_add_u32 v{VW+i}, {i*(32768-1024)}, v3")

    def issue(slot):
        o = []
        o.append(f"s_lshl_b32 s{sXO}, s{sKC}, 7")
        o.append(f"s_add_u32 m0, s{sM0X}, {slot*32768}")
        o.append(f"s_add_u32 s{sXO}, s{sXO}, s{sXB}")
        for i in range(4):
            o.append(f"buffer_load_dwordx4 v{VX+i}, s[{S_X}:{S_X+3}], s{sXO} offen offset:{i*1024} {xfl} lds")
        o.append(f"s_lshl_b32 s{sWO_}, s{sKC}, 19")
        o.append(f"s_add_u32 m0, s{sM0X}, {slot*32768+16384}")
        o.append(f"s_add_u32 s{sWO_}, s{sWO_}, s{sWB}")
        for i in range(4):
            o.append(f"buffer_load_dwordx4 v{VW+i}, s[{S_WQ}:{S_WQ+3}], s{sWO_} offen offset:{i*1024} {wfl} lds")
        o.append(f"s_add_u32 s{sKC}, s{sKC}, 1")
        o.append(f"s_and_b32 s{sKC}, s{sKC}, 15")
        return o
    for s in range(4): a.ext(issue(s))
    stamp(a, 1, st)

    VB, VA = 16, 24
    a("v_and_b32 v2, 31, v1")
    a("v_lshrrev_b32 v3, 5, v1")
    a("v_lshrrev_b32 v12, 1, v2"); a("v_and_b32 v12, 7, v12")
    a("v_xor_b32 v12, v12, v3")
    a("v_lshlrev_b32 v12, 4, v12")
    a("v_lshl_add_u32 v12, v2, 7, v12")
    a(f"s_lshl_b32 s56, s{sWM}, 13")
    a("v_add_u32 v12, s56, v12")
    for j in range(4):
        a(f"v_xor_b32 v{VB+j}, {j*32}, v12")
        a(f"v_add_u32 v{VB+4+j}, 0x10000, v{VB+j}")
    a("v_bfe_u32 v12, v1, 2, 2")
    a("v_lshl_add_u32 v13, v3, 3, v12")
    a("v_lshlrev_b32 v13, 8, v13")
    a("v_bfe_u32 v14, v1, 4, 1"); a("v_lshl_add_u32 v13, v14, 5, v13")
    a("v_and_b32 v14, 1, v1"); a("v_lshl_add_u32 v13, v14, 4, v13")
    a("v_bfe_u32 v14, v1, 1, 1"); a("v_lshl_add_u32 v13, v14, 3, v13")
    a("v_add_u32 v13, 16384, v13")
    a(f"s_lshl_b32 s56, s{sWN}, 1")
    for nb in range(2):
        a(f"s_add_u32 s57, s56, {nb}")
        a("v_xor_b32 v14, s57, v12")
        a(f"v_lshl_add_u32 v{VA+nb}, v14, 6, v13")
        a(f"v_add_u32 v{VA+2+nb}, 0x10000, v{VA+nb}")
    ACC = 32
    FR = 96
    def reads(slot, fs):
        o = []
        if noread: return o
        hi = slot >> 1; off = (slot & 1) * 32768
        base = FR + fs * 64
        for j in range(4):
            for nb in range(2):
                d = base + (nb * 4 + j) * 4
                for e2 in range(2):
                    o.append(f"ds_read_b64_tr_b16 {vr(d+2*e2,2)}, v{VA+2*hi+nb} offset:{off + (16*j+4*e2)*256}")
            for mb in range(2):
                d = base + 32 + (mb * 4 + j) * 4
                o.append(f"ds_read_b128 {vr(d,4)}, v{VB+4*hi+j} offset:{off + mb*4096}")
        return o
    def mfmas(fs, first):
        o = []
        if nomfma: return ["s_nop 0"] * 16
        base = FR + fs * 64
        for j in range(4):
            for nb in range(2):
                for mb in range(2):
                    d = ACC + (nb * 2 + mb) * 16
                    c = "0" if (first and j == 0) else vr(d, 16)
                    o.append(f"v_mfma_f32_32x32x16_bf16 {vr(d,16)}, {vr(base+(nb*4+j)*4,4)}, {vr(base+32+(mb*4+j)*4,4)}, {c}")
        return o
    for i in range(64): a(f"v_mov_b32 v{ACC+i}, 0")
    a("s_waitcnt vmcnt(24)"); a("s_barrier")
    a.ext(reads(0, 0))
    def iteration(st4, do_issue, vm, last=False):
        if not last:
            a(f"s_waitcnt vmcnt({vm}) lgkmcnt(0)"); a("s_barrier")
            fill = reads((st4 + 1) & 3, (st4 + 1) & 1)
            if do_issue:
                iss = issue(st4)
                f2 = []
                ri, ii = iter(fill), iter(iss)
                fill = fill[:6] + iss[:7] + fill[6:12] + iss[7:] + fill[12:]
            a.ext(interleave(mfmas(st4 & 1, False), fill, [3] * 16))
        else:
            a("s_waitcnt lgkmcnt(0)")
            a.ext(mfmas(st4 & 1, False))
    stamp(a, 2, st)
    if unroll:
        for q in range(3):
            for st4 in range(4): iteration(st4, True, 16)
            stamp(a, 3 + q, st)
    else:
        a(f"s_mov_b32 s{sCNT}, 0")
        a.label(f"{L}_loop")
        for st4 in range(4): iteration(st4, True, 16)
        a(f"s_add_u32 s{sCNT}, s{sCNT}, 1")
        a(f"s_cmp_lt_u32 s{sCNT}, 3")
        a(f"s_cbranch_scc1 {L}_loop")
        stamp(a, 3, st); stamp(a, 4, st); stamp(a, 5, st)
    iteration(0, False, 16); iteration(1, False, 8); iteration(2, False, 0); iteration(3, False, 0, last=True)
    stamp(a, 6, st)
    a("v_bfe_u32 v2, v1, 4, 1"); a("v_lshlrev_b32 v2, 17, v2")
    a("v_lshrrev_b32 v3, 5, v1"); a("v_lshl_add_u32 v2, v3, 8, v2")
    a("v_and_b32 v3, 15, v1"); a("v_lshl_add_u32 v2, v3, 4, v2")
    a(f"s_lshl_b32 s56, s{sMI}, 1"); a(f"s_add_u32 s56, s56, s{sWM}"); a("s_lshl_b32 s56, s56, 19")
    a(f"s_lshl_b32 s57, s{sHEAD}, 12"); a("s_add_u32 s56, s56, s57")
    a(f"s_lshl_b32 s57, s{sWN}, 11"); a("s_add_u32 s56, s56, s57")
    a(f"s_add_u32 s56, s56, {WS_Q}")
    a("s_add_u32 s57, s56, 0x40000")
    a(f"s_mov_b32 s58, {f2u(CSCALE):#x}")
    a("s_nop 3")
    T = FR
    k = 0
    for nb in range(2):
        for mb in range(2):
            d = ACC + (nb * 2 + mb) * 16
            for g in range(2):
                t = T + 4 * k; k += 1
                for i in range(8): a(f"v_mul_f32 v{d+8*g+i}, s58, v{d+8*g+i}")
                for i in range(4): a(f"v_cvt_pk_bf16_f32 v{t+i}, v{d+8*g+2*i}, v{d+8*g+2*i+1}")
                a(f"buffer_store_dwordx4 {vr(t,4)}, v2, s[{S_WS}:{S_WS+3}], s{56+mb} offen offset:{(2*nb+g)*512} {stq}")
```

```python
from common import *
SPIN_MAX = 1 << 16

FL_Q  = WS_FLAG
FL_S  = WS_FLAG + 0x2000
FL_O  = WS_FLAG + 0x4000
FL_PO = WS_FLAG + 0x6000

def nonce_publish(a, L, v):
    a(f"s_or_b32 s62, s2, s{S_WAVE}")
    a("s_cmp_lg_u32 s62, 0")
    a(f"s_cbranch_scc1 {L}_np")
    a("s_memrealtime s[62:63]")
    a("s_waitcnt lgkmcnt(0)")
    a("s_or_b32 s62, s62, 1"); a("s_or_b32 s63, s63, 0x80000000")
    a(f"v_mov_b32 v{v}, s62"); a(f"v_mov_b32 v{v+1}, s63"); a(f"v_mov_b32 v{v+2}, 0")
    a("s_mov_b64 exec, 1")
    a(f"global_store_dwordx2 v{v+2}, {vr(v,2)}, s[{S_DBG}:{S_DBG+1}] sc0 sc1")
    a("s_mov_b64 exec, -1")
    a.label(f"{L}_np")

def nonce_get(a, L, v):
    a(f"v_mov_b32 v{v+2}, 0")
    a("s_mov_b32 s62, 0")
    a.label(f"{L}_ng")
    a(f"global_load_dwordx2 {vr(v,2)}, v{v+2}, s[{S_DBG}:{S_DBG+1}] sc0 sc1")
    a("s_add_u32 s62, s62, 1")
    a("s_waitcnt vmcnt(0)")
    a(f"v_readfirstlane_b32 s{S_NONCE}, v{v}")
    a(f"v_readfirstlane_b32 s{S_NONCE+1}, v{v+1}")
    a(f"s_cmp_ge_u32 s62, {SPIN_MAX}")
    a(f"s_cbranch_scc1 {L}_ngx")
    a(f"s_and_b32 s63, s{S_NONCE}, 1")
    a(f"s_lshr_b32 s64, s{S_NONCE+1}, 31")
    a("s_and_b32 s63, s63, s64")
    a(f"s_cbranch_scc0 {L}_ng")
    a.label(f"{L}_ngx")

def signal(a, soff, v):
    a(f"v_mov_b32 v{v}, s{S_NONCE}"); a(f"v_mov_b32 v{v+1}, s{S_NONCE+1}"); a(f"v_mov_b32 v{v+2}, 0")
    a("s_waitcnt vmcnt(0)")
    a("s_mov_b64 exec, 1")
    a(f"buffer_store_dwordx2 {vr(v,2)}, v{v+2}, s[{S_WS}:{S_WS+3}], s{soff} offen sc1")
    a("s_mov_b64 exec, -1")

def wait_flags(a, L, soff, n, v, voff_ready=False, sleep=0):
    if not voff_ready:
        a(f"v_and_b32 v{v+2}, {n-1}, v1"); a(f"v_lshlrev_b32 v{v+2}, 3, v{v+2}")
    a("s_mov_b32 s62, 0")
    a.label(f"{L}_w")
    a(f"buffer_load_dwordx2 {vr(v,2)}, v{v+2}, s[{S_WS}:{S_WS+3}], s{soff} offen sc1")
    a("s_add_u32 s62, s62, 1")
    a(f"s_cmp_ge_u32 s62, {SPIN_MAX}")
    a(f"s_cbranch_scc1 {L}_wx")
    a("s_waitcnt vmcnt(0)")
    a(f"v_cmp_ne_u64 vcc, s[{S_NONCE}:{S_NONCE+1}], {vr(v,2)}")
    if sleep:
        a(f"s_cbranch_vccz {L}_wx")
        a(f"s_sleep {sleep}")
        a(f"s_branch {L}_w")
    else:
        a(f"s_cbranch_vccnz {L}_w")
    a.label(f"{L}_wx")
    a("s_waitcnt vmcnt(0)")
```

```python
from qproj import *
from attn import *
from oproj import *
def gen(fn, st=False, kvfl="nt"):
    a = Asm()
    header(a, ["; @launch kernel=q_kernel grid=(256,1,1) block=(256,1,1) lds=131072",
               "; @launch kernel=att_kernel grid=(256,1,1) block=(256,1,1) lds=163840",
               "; @launch kernel=o_kernel grid=(256,1,1) block=(256,1,1) lds=163840"])
    kernel_begin(a, "q_kernel")
    prologue(a, "Lq_done")
    a(f"s_cmp_eq_u32 s{S_ROLE}, 0"); a("s_cbranch_scc1 Lq_done")
    qproj(a, "Lq")
    a.label("Lq_done")
    a("s_endpgm")
    kernel_begin(a, "att_kernel")
    prologue(a, "La_done")
    nonce_publish(a, "La", 28)
    attn_setup(a)
    load_q(a)
    fill_first(a)
    for p in range(1, R): fill_static(a, p)
    attn_addr(a)
    attn_main(a, "La", vm0=4*(R-1))
    nonce_get(a, "La", 20)
    attn_epilogue(a, "Lae")
    a.label("La_done")
    a("s_endpgm")
    kernel_begin(a, "o_kernel")
    prologue(a, "Lo_done", stamps=st)
    nonce_publish(a, "Lo", 28)
    oproj_setup(a)
    a(f"s_lshl_b32 s59, s{S_WAVE}, 12")
    a(f"v_add_u32 v16, 0x10000, v{VWA}")
    for half in range(2):
        for u in range(8): a.ext(wo_issue([f"s_add_u32 m0, s59, {u*16384}"], "nt"))
        for u in range(8):
            a(f"s_waitcnt vmcnt({28-4*u})"); a("s_barrier")
            a.ext(wo_reads(half*8+u, VWA if u < 4 else 16, (u&3)*16384))
        a("s_waitcnt lgkmcnt(0)"); a("s_barrier")
    stamp(a, 1, st)
    nonce_get(a, "Lo", 20)
    stamp(a, 2, st)
    oproj_main(a, "Lo", st=st, waitflags=False)
    if st:
        a("s_waitcnt vmcnt(0)")
        stamp(a, 7)
        write_stamps(a, 8, "Lo_done")
    else:
        a.label("Lo_done")
    a("s_endpgm")
    descriptor(a, "q_kernel"); descriptor(a, "att_kernel"); descriptor(a, "o_kernel")
    print(fn, "hazards:", check_hazards(a.lines))
    t = a.text()
    if kvfl != "nt": t = t.replace(" nt lds", " lds")
    open("../" + fn, "w").write(t)
gen("v1.s"); gen("v1_st.s", st=True); gen("v1_plain.s", kvfl="")
```

```python
from common import *
from sync import *

R = 9
KP, VPc = 1056, 1088
KAREA = 8 * KP
SLOT = KAREA + 8 * VPc
VKA, VVA, VKB, VVB = 2, 3, 4, 5
VKO, VVO = 6, 7
VL = 8
VT = 20
VX = 28
VO = 32
VQ = 96
VS = 128
VC = 160
VP = 176
VK = 192
VV = 224
sB, sHKV, sSO, sM0, sRD, sTHR, sFLOOR, sCNT, sWK, sWV = range(44, 54)
S_LINK = 60
THR = 65536.0

def attn_setup(a, NT=32, NTP=None):
    a(f"s_lshr_b32 s{sHKV}, s{S_XCD}, 1")
    a(f"s_and_b32 s{sB}, s{S_XCD}, 1")
    a(f"s_lshl_b32 s62, s{S_P}, 1"); a(f"s_add_u32 s{sB}, s{sB}, s62")
    NTP = 64 - NT if NTP is None else NTP
    assert NT + NTP == 64
    a(f"s_lshl_b32 s62, s{sB}, 2"); a(f"s_add_u32 s62, s62, s{sHKV}"); a("s_lshl_b32 s62, s62, 19")
    a(f"s_mul_i32 s63, s{S_ROLE}, {NT*8192}"); a("s_add_u32 s62, s62, s63")
    a(f"s_mov_b32 s63, {NT*8192}"); a(f"s_cmp_eq_u32 s{S_ROLE}, 0"); a(f"s_cselect_b32 s63, s63, {NTP*8192}")
    for s in (S_K, S_V):
        a(f"s_add_u32 s{s}, s{s}, s62"); a(f"s_addc_u32 s{s+1}, s{s+1}, 0"); a(f"s_mov_b32 s{s+2}, s63")
    a(f"s_mul_i32 s{sWK}, s{S_WAVE}, {2*KP}")
    a(f"s_mul_i32 s{sWV}, s{S_WAVE}, {2*VPc}"); a(f"s_add_u32 s{sWV}, s{sWV}, {KAREA}")
    a(f"v_lshrrev_b32 v{VX}, 4, v1")
    a(f"v_and_b32 v{VX+1}, 15, v1")
    a(f"v_lshlrev_b32 v{VX+2}, 4, v{VX+1}")
    a(f"v_lshl_add_u32 v{VX+2}, v{VX}, 11, v{VX+2}")
    a(f"s_lshl_b32 s62, s{S_WAVE}, 9")
    a(f"v_add_u32 v{VVO}, s62, v{VX+2}")
    a(f"v_and_b32 v{VX+2}, 16, v1")
    a(f"v_xor_b32 v{VKO}, v{VVO}, v{VX+2}")

def attn_addr(a):
    a(f"v_and_b32 v{VX}, 7, v1"); a(f"v_mul_u32_u24 v{VX}, {KP}, v{VX}")
    a(f"v_bfe_u32 v{VX+1}, v1, 3, 2"); a(f"v_lshl_add_u32 v{VX}, v{VX+1}, 8, v{VX}")
    a(f"v_lshrrev_b32 v{VX+2}, 5, v1"); a(f"v_xor_b32 v{VX+1}, v{VX+1}, v{VX+2}"); a(f"v_and_b32 v{VX+1}, 1, v{VX+1}")
    a(f"v_lshl_add_u32 v{VKB}, v{VX+1}, 4, v{VX}")
    a(f"v_bfe_u32 v{VX}, v1, 2, 2")
    a(f"v_lshl_add_u32 v{VX}, v{VX+2}, 2, v{VX}"); a(f"v_mul_u32_u24 v{VX}, {VPc}, v{VX}")
    a(f"v_bfe_u32 v{VX+3}, v1, 4, 1"); a(f"v_lshl_add_u32 v{VX}, v{VX+3}, 5, v{VX}")
    a(f"v_and_b32 v{VX+3}, 1, v1"); a(f"v_lshl_add_u32 v{VX}, v{VX+3}, 4, v{VX}")
    a(f"v_bfe_u32 v{VX+3}, v1, 1, 1"); a(f"v_lshl_add_u32 v{VX}, v{VX+3}, 3, v{VX}")
    a(f"v_add_u32 v{VVB}, {KAREA}, v{VX}")

def ldK(so, i): return f"buffer_load_dwordx4 v{VKO}, s[{S_K}:{S_K+3}], {so} offen offset:{256*i} nt lds"
def ldV(so, i): return f"buffer_load_dwordx4 v{VVO}, s[{S_V}:{S_V+3}], {so} offen offset:{256*i} nt lds"

def fill_first(a):
    a(f"s_mov_b32 m0, s{sWK}"); a("s_mov_b32 s62, 8192"); a(ldK("0", 0))
    a(f"s_add_u32 m0, s{sWK}, {KP-256}"); a("s_nop 0"); a(ldK("0", 1))
    a(f"s_add_u32 m0, s{sWK}, {KAREA}"); a("s_nop 0"); a(ldK("s62", 0))
    a(f"s_add_u32 m0, s{sWK}, {KAREA+KP-256}"); a("s_nop 0"); a(ldK("s62", 1))
    a(f"s_add_u32 s{S_K}, s{S_K}, 16384"); a(f"s_addc_u32 s{S_K+1}, s{S_K+1}, 0"); a(f"s_sub_u32 s{S_K+2}, s{S_K+2}, 16384")
    a(f"s_mov_b32 s{sSO}, 0")

def fill_static(a, pos):
    b = pos * SLOT
    a(f"s_add_u32 m0, s{sWK}, {b}"); a("s_nop 0"); a(ldK(f"s{sSO}", 0))
    a(f"s_add_u32 m0, s{sWK}, {b+KP-256}"); a("s_nop 0"); a(ldK(f"s{sSO}", 1))
    a(f"s_add_u32 m0, s{sWV}, {b}"); a("s_nop 0"); a(ldV(f"s{sSO}", 0))
    a(f"s_add_u32 m0, s{sWV}, {b+VPc-256}"); a("s_nop 0"); a(ldV(f"s{sSO}", 1))
    a(f"s_add_u32 s{sSO}, s{sSO}, 8192")

def kreads(off=0, va=VKA):
    return [f"ds_read_b128 {vr(VK+4*j,4)}, v{va} offset:{off+32*j}" for j in range(8)]
def vreads():
    o = []
    for ts in range(2):
        for db in range(4):
            for e2 in range(2):
                o.append(f"ds_read_b64_tr_b16 {vr(VV+(db*2+ts)*4+2*e2,2)}, v{VVA} offset:{(2*ts+e2)*256+db*64}")
    return o
def qk(buf):
    d = VS + 16 * buf
    return [f"v_mfma_f32_32x32x16_bf16 {vr(d,16)}, {vr(VK+4*j,4)}, {vr(VQ+4*j,4)}, {vr(VC,16) if j == 0 else vr(d,16)}" for j in range(8)]
def pv(buf):
    o = []
    for ts in range(2):
        for db in range(4):
            d = VO + 16 * db
            o.append(f"v_mfma_f32_32x32x16_bf16 {vr(d,16)}, {vr(VV+(db*2+ts)*4,4)}, {vr(VP+8*buf+4*ts,4)}, {vr(d,16)}")
    return o
def soft_groups(buf, lo, hi):
    s = VS + 16 * buf; p = VP + 8 * buf; acc = VL + buf
    G = []
    for k in range(lo, hi + 1):
        g = []
        if k < hi: g.append(f"v_exp_f32 v{VT+(k&7)}, v{s+k}")
        if k > lo:
            e = k - 1
            src = VL + (buf ^ 1) if e == 0 else acc
            g.append(f"v_add_f32 v{acc}, v{src}, v{VT+(e&7)}")
            if e & 1: g.append(f"v_cvt_pk_bf16_f32 v{p+e//2}, v{VT+((e-1)&7)}, v{VT+(e&7)}")
        G.append(g)
    return G

def issue_dyn():
    so = f"s{sSO}"
    return [(f"s_add_u32 m0, s{sM0}, s{sWK}", ldK(so, 0)),
            (f"s_add_u32 m0, m0, {KP-256}", ldK(so, 1)),
            (f"s_add_u32 m0, s{sM0}, s{sWV}", ldV(so, 0)),
            (f"s_add_u32 m0, m0, {VPc-256}", ldV(so, 1))]

def rare(a, L, cur):
    nxt = cur ^ 1
    s = VS + 16 * cur; sn = VS + 16 * nxt
    a.label(f"{L}_rare{cur}")
    a(f"v_max3_f32 v{VX}, v{s}, v{s+1}, v{s+2}")
    for i in range(3, 15, 2): a(f"v_max3_f32 v{VX}, v{VX}, v{s+i}, v{s+i+1}")
    a(f"v_max_f32 v{VX}, v{VX}, v{s+15}")
    a(f"v_mov_b32 v{VX+1}, v{VX}")
    a("s_nop 1")
    a(f"v_permlane32_swap_b32 v{VX}, v{VX+1}")
    a(f"v_max3_f32 v{VX}, v{VX}, v{VX+1}, s{sFLOOR}")
    a(f"v_max_f32 v{VX+1}, 0, v{VX}")
    a(f"v_exp_f32 v{VX+1}, -v{VX+1}")
    for i in range(16): a(f"v_sub_f32 v{s+i}, v{s+i}, v{VX}")
    for i in range(64): a(f"v_mul_f32 v{VO+i}, v{VO+i}, v{VX+1}")
    a(f"v_mul_f32 v{VL+nxt}, v{VL+nxt}, v{VX+1}")
    for i in range(16): a(f"v_sub_f32 v{VC+i}, v{VC+i}, v{VX}")
    for i in range(16): a(f"v_sub_f32 v{sn+i}, v{sn+i}, v{VX}")
    G = soft_groups(cur, 0, 16)
    for g in G[:-1]: a.ext(g)
    a(f"s_mov_b32 s{sTHR}, {f2u(THR):#x}")
    a.ext(G[-1])
    a(f"s_mov_b32 s{sFLOOR}, 0")
    a(f"s_setpc_b64 s[{S_LINK}:{S_LINK+1}]")

NB = 7

def iteration(a, L, cur, tag, do_qk=True, do_kread=True, do_next=True, vm=None, nb=None, loop=None):
    nb = NB if nb is None else nb
    nxt = cur ^ 1
    a(f"s_waitcnt vmcnt({4*(R-2) if vm is None else vm}) lgkmcnt(0)")
    a("s_barrier")
    Gall = soft_groups(cur, 0, 16)
    GA = Gall[nb:]
    vrd = vreads(); iss = issue_dyn()
    gaps = [[] for _ in range(8)]
    k = 0
    for gi, n in enumerate((3, 3, 3, 3, 2, 2, 0, 0)):
        gaps[gi] += vrd[k:k + n]; k += n
    ng = len(GA)
    for i, g in enumerate(GA):
        gaps[min(7, (i * 8) // ng)] += g
    m = qk(nxt) if do_qk else [None] * 8
    for gi in range(8):
        if m[gi]: a(m[gi])
        a.ext(gaps[gi])
    a(f"v_cmp_lt_f32 vcc, s{sTHR}, v{VL+cur}")
    a(f"s_cbranch_vccz {L}_ok{tag}")
    a(f"s_call_b64 s[{S_LINK}:{S_LINK+1}], {L}_rare{cur}")
    a.label(f"{L}_ok{tag}")
    a("s_waitcnt lgkmcnt(0)")
    krd = kreads() if do_kread else []
    GB = soft_groups(nxt, 0, 16)[:nb] if do_next else []
    gaps = [[] for _ in range(8)]
    gaps[0] += krd[0:4] + [iss[0][0]]
    gaps[1] += [iss[0][1]] + krd[4:8] + [iss[1][0]]
    gaps[2] += [iss[1][1]]
    gaps[3] += [iss[2][0]]
    gaps[4] += [iss[2][1], iss[3][0]]
    gaps[5] += [iss[3][1], f"s_mov_b32 s{sM0}, s{sRD}", f"s_add_u32 s{sRD}, s{sRD}, {SLOT}"]
    gaps[6] += [f"s_cmp_eq_u32 s{sRD}, {R*SLOT}", f"s_cselect_b32 s{sRD}, 0, s{sRD}", f"s_add_u32 s{sSO}, s{sSO}, 8192"]
    gaps[7] += [f"v_add_u32 v{VVA}, s{sRD}, v{VVB}", f"v_add_u32 v{VKA}, s{sRD}, v{VKB}"]
    if loop: gaps[7] += loop
    ng = len(GB)
    for i, g in enumerate(GB):
        gi = min(7, 2 + (i * 6) // ng)
        gaps[gi] = g + gaps[gi] if False else gaps[gi] + g
    m = pv(cur)
    if not do_kread:
        gaps[1] += ["s_nop 3"]
    for gi in range(8):
        a(m[gi]); a.ext(gaps[gi])

def attn_main(a, L, NT=32, st=False, vm0=0):
    for i in range(64): a(f"v_mov_b32 v{VO+i}, 0")
    for i in range(16): a(f"v_mov_b32 v{VC+i}, 0")
    a(f"v_mov_b32 v{VL}, 0"); a(f"v_mov_b32 v{VL+1}, 0")
    for i in range(8): a(f"v_mov_b32 v{VT+i}, 0")
    a(f"s_mov_b32 s{sTHR}, {f2u(-1.0):#x}")
    a(f"s_mov_b32 s{sFLOOR}, 0xff800000")
    a(f"s_mov_b32 s{sM0}, 0"); a(f"s_mov_b32 s{sRD}, {SLOT}")
    a(f"v_add_u32 v{VVA}, {SLOT}, v{VVB}"); a(f"v_add_u32 v{VKA}, {SLOT}, v{VKB}")
    a(f"s_waitcnt vmcnt({vm0})")
    a("s_barrier")
    stamp(a, 2, st)
    a.ext(kreads(0, VKB))
    q0 = qk(0); k1 = kreads(KAREA, VKB)
    for j in range(8):
        a(f"s_waitcnt lgkmcnt({7})" if True else "")
        a(q0[j]); a(k1[j])
    a(f"s_mov_b32 s{sCNT}, 0")
    a("s_nop 7")
    a.label(f"{L}_loop")
    iteration(a, L, 0, "a")
    iteration(a, L, 1, "b", loop=[f"s_add_u32 s{sCNT}, s{sCNT}, 2", f"s_cmp_lt_u32 s{sCNT}, {NT-2}"])
    a(f"s_cbranch_scc1 {L}_loop")
    iteration(a, L, 0, "c", do_kread=False)
    iteration(a, L, 1, "d", do_qk=False, do_kread=False, do_next=False)
    a(f"v_mov_b32 v{VL}, v{VL+1}")
    a(f"s_branch {L}_end")
    rare(a, L, 0); rare(a, L, 1)
    a.label(f"{L}_end")

def load_q(a, fl=""):
    a(f"v_bfe_u32 v{VX}, v1, 4, 1"); a(f"v_lshlrev_b32 v{VX}, 12, v{VX}")
    a(f"v_lshrrev_b32 v{VX+1}, 5, v1"); a(f"v_lshl_add_u32 v{VX}, v{VX+1}, 8, v{VX}")
    a(f"v_and_b32 v{VX+1}, 15, v1"); a(f"v_lshl_add_u32 v{VX}, v{VX+1}, 4, v{VX}")
    a(f"s_lshl_b32 s62, s{sB}, 17"); a(f"s_lshl_b32 s63, s{sHKV}, 15"); a("s_add_u32 s62, s62, s63")
    a(f"s_lshl_b32 s63, s{S_WAVE}, 13"); a("s_add_u32 s62, s62, s63")
    if WS_Q: a(f"s_add_u32 s62, s62, {WS_Q}")
    for j in range(8):
        a(f"buffer_load_dwordx4 {vr(VQ+4*j,4)}, v{VX}, s[{S_WS}:{S_WS+3}], s62 offen offset:{j*512} {fl}")

sPAIR, sA, sBq = 66, 67, 68
def epilogue_common(a):
    a(f"v_mov_b32 v{VX}, v{VL}")
    a(f"s_lshl_b32 s{sPAIR}, s{sB}, 2"); a(f"s_add_u32 s{sPAIR}, s{sPAIR}, s{sHKV}")
    a(f"s_lshl_b32 s{sPAIR}, s{sPAIR}, 2"); a(f"s_add_u32 s{sPAIR}, s{sPAIR}, s{S_WAVE}")
    a(f"v_permlane32_swap_b32 v{VX}, v{VL}")
    a(f"v_lshlrev_b32 v{VX+2}, 4, v1")
    a(f"v_lshlrev_b32 v{VX+3}, 3, v1")
    a(f"v_add_f32 v{VL}, v{VL}, v{VX}")
    a(f"s_lshl_b32 s{sA}, s{sPAIR}, 13"); a(f"s_add_u32 s{sA}, s{sA}, {WS_SP}")
    a(f"s_lshl_b32 s{sBq}, s{sPAIR}, 9"); a(f"s_add_u32 s{sBq}, s{sBq}, {WS_SML}")
    a(f"s_lshl_b32 s65, s{sPAIR}, 3"); a(f"s_add_u32 s65, s65, {FL_S}")

def epilogue_S(a):
    a(f"v_rcp_f32 v{VX}, v{VL}")
    a(f"v_mov_b32 v{VT}, v{VC}"); a(f"v_mov_b32 v{VT+1}, v{VL}")
    a(f"buffer_store_dwordx2 {vr(VT,2)}, v{VX+3}, s[{S_WS}:{S_WS+3}], s{sBq} offen sc1")
    a(f"s_add_u32 s69, s{sA}, 4096")
    for g in range(8):
        o = VO + 8 * g; t = VK + 4 * g
        for i in range(8): a(f"v_mul_f32 v{o+i}, v{o+i}, v{VX}")
        for i in range(4): a(f"v_cvt_pk_bf16_f32 v{t+i}, v{o+2*i}, v{o+2*i+1}")
        a(f"buffer_store_dwordx4 {vr(t,4)}, v{VX+2}, s[{S_WS}:{S_WS+3}], s{sA if g < 4 else 69} offen offset:{(g&3)*1024} sc1")
    signal(a, 65, VT + 2)

def epilogue_P(a, L, st=False):
    wait_flags(a, f"{L}_sp", 65, 1, VT + 2)
    stamp(a, 4, st)
    a(f"buffer_load_dwordx2 {vr(VT,2)}, v{VX+3}, s[{S_WS}:{S_WS+3}], s{sBq} offen sc1")
    a(f"s_add_u32 s69, s{sA}, 4096")
    for g in range(8):
        a(f"buffer_load_dwordx4 {vr(VK+4*g,4)}, v{VX+2}, s[{S_WS}:{S_WS+3}], s{sA if g < 4 else 69} offen offset:{(g&3)*1024} sc1")
    a(f"v_bfe_u32 v{VX}, v1, 4, 1"); a(f"v_lshlrev_b32 v{VX}, 13, v{VX}")
    a(f"v_lshrrev_b32 v{VX+1}, 5, v1"); a(f"v_lshl_add_u32 v{VX}, v{VX+1}, 9, v{VX}")
    a(f"v_and_b32 v{VX+1}, 15, v1"); a(f"v_lshl_add_u32 v{VX}, v{VX+1}, 4, v{VX}")
    a(f"s_lshr_b32 s66, s{sB}, 1"); a("s_lshl_b32 s66, s66, 18"); a(f"s_lshl_b32 s63, s{sHKV}, 16"); a("s_add_u32 s66, s66, s63")
    a(f"s_lshl_b32 s63, s{S_WAVE}, 14"); a("s_add_u32 s66, s66, s63"); a(f"s_add_u32 s66, s66, {WS_O}")
    a(f"s_and_b32 s63, s{sB}, 1"); a("s_lshl_b32 s63, s63, 8"); a("s_add_u32 s66, s66, s63")
    a("s_add_u32 s64, s66, 4096")
    a(f"s_lshl_b32 s65, s{sHKV}, 2"); a(f"s_add_u32 s65, s65, s{S_WAVE}"); a("s_lshl_b32 s65, s65, 5")
    a(f"s_add_u32 s65, s65, s{sB}"); a("s_lshl_b32 s65, s65, 3"); a(f"s_add_u32 s65, s65, {FL_O}")
    a("s_waitcnt vmcnt(8)")
    a(f"v_min_f32 v{VT+2}, v{VC}, v{VT}")
    a(f"v_sub_f32 v{VT+3}, v{VT+2}, v{VC}")
    a(f"v_sub_f32 v{VT+4}, v{VT+2}, v{VT}")
    a(f"v_exp_f32 v{VT+3}, v{VT+3}")
    a(f"v_exp_f32 v{VT+4}, v{VT+4}")
    a("s_nop 0")
    a(f"v_mul_f32 v{VT+4}, v{VT+4}, v{VT+1}")
    a(f"v_fma_f32 v{VT+5}, v{VL}, v{VT+3}, v{VT+4}")
    a(f"v_rcp_f32 v{VT+5}, v{VT+5}")
    a("s_nop 0")
    a(f"v_mul_f32 v{VT+3}, v{VT+3}, v{VT+5}")
    a(f"v_mul_f32 v{VT+4}, v{VT+4}, v{VT+5}")
    for i in range(64): a(f"v_mul_f32 v{VO+i}, v{VO+i}, v{VT+3}")
    for g in range(8):
        o = VO + 8 * g; t = VK + 4 * g; u = VV + 4 * g
        a(f"s_waitcnt vmcnt({7})")
        for i in range(4):
            a(f"v_lshlrev_b32 v{VT+6}, 16, v{t+i}")
            a(f"v_and_b32 v{VT+7}, 0xffff0000, v{t+i}")
            a(f"v_fmac_f32 v{o+2*i}, v{VT+6}, v{VT+4}")
            a(f"v_fmac_f32 v{o+2*i+1}, v{VT+7}, v{VT+4}")
        for i in range(4): a(f"v_cvt_pk_bf16_f32 v{u+i}, v{o+2*i}, v{o+2*i+1}")
        a(f"buffer_store_dwordx4 {vr(u,4)}, v{VX}, s[{S_WS}:{S_WS+3}], s{66 if g < 4 else 64} offen offset:{(g&3)*1024} sc1")
    signal(a, 65, VT + 2)

def attn_epilogue(a, L, st=False):
    epilogue_common(a)
    a(f"s_cmp_lg_u32 s{S_ROLE}, 0")
    a(f"s_cbranch_scc1 {L}_P")
    epilogue_S(a)
    a(f"s_branch {L}_E")
    a.label(f"{L}_P")
    epilogue_P(a, L, st)
    a.label(f"{L}_E")
```

```python
from common import *
from sync import *
import attn
from attn import (KP, VPc, KAREA, SLOT, VL, VT, VX, VO, VQ, VS, VC, VP, VK, VV, sB, sHKV, sTHR, sFLOOR, sWK, sWV, S_LINK,
                  qk, pv, rare, load_q, attn_epilogue, VKO, VVO)
import oproj
from oproj import VWO, sWOS

NSLOT = 9
GRP = 3 * SLOT
VKG = (2, 3, 4); VVG = (16, 17, 18); VWG = (14, 19, 5)
sW4 = 59
sSOK = 46

class VM:
    def __init__(self): self.ops = []
    def add(self, tag, n=1): self.ops += [tag] * n
    def cnt(self, *tags):
        for t in tags: assert t in self.ops, t
        last = max(i for i, t in enumerate(self.ops) if t in tags)
        n = len(self.ops) - 1 - last
        assert n <= 63, n
        return n

def addr_setup(a):
    attn.attn_addr(a)
    a(f"v_mov_b32 v{VVG[0]}, v5")
    a(f"v_mov_b32 v{VKG[0]}, v4")
    for g in (1, 2):
        a(f"v_add_u32 v{VKG[g]}, {g*GRP}, v{VKG[0]}")
        a(f"v_add_u32 v{VVG[g]}, {g*GRP}, v{VVG[0]}")
        a(f"v_add_u32 v{VWG[g]}, {g*GRP}, v{VWG[0]}")
    a(f"s_lshl_b32 s{sW4}, s{S_WAVE}, 12")

def unit_issue(u, slot, NT, kvfl="nt", wofl=""):
    b = slot * SLOT
    K = lambda i: f"buffer_load_dwordx4 v{VKO}, s[{S_K}:{S_K+3}], s{sSOK} offen offset:{256*i} {kvfl} lds"
    V = lambda i: f"buffer_load_dwordx4 v{VVO}, s[{S_V}:{S_V+3}], s{sSOK} offen offset:{256*i} {kvfl} lds"
    o = []
    if u[0] == 'p':
        p = u[1]
        if p == 0:
            o.append(([f"s_mov_b32 s{sSOK}, 0", f"s_add_u32 m0, s{sWK}, {b}"], K(0)))
            o.append(([f"s_add_u32 m0, s{sWK}, {b+KP-256}"], K(1)))
            o.append(([f"s_mov_b32 s{sSOK}, 8192", f"s_add_u32 m0, s{sWK}, {b+KAREA}"], K(0)))
            o.append(([f"s_add_u32 m0, s{sWK}, {b+KAREA+KP-256}"], K(1)))
        else:
            if p + 1 < NT:
                o.append(([f"s_mov_b32 s{sSOK}, {(p+1)*8192}", f"s_add_u32 m0, s{sWK}, {b}"], K(0)))
                o.append(([f"s_add_u32 m0, s{sWK}, {b+KP-256}"], K(1)))
            o.append(([f"s_mov_b32 s{sSOK}, {(p-1)*8192}", f"s_add_u32 m0, s{sWV}, {b}"], V(0)))
            o.append(([f"s_add_u32 m0, s{sWV}, {b+VPc-256}"], V(1)))
    else:
        i0 = u[1]
        for i in range(4):
            pre = [f"s_add_u32 s{sSOK}, s{sWOS}, {i0*64*2048}", f"s_add_u32 m0, s{sW4}, {b}"] if i == 0 else []
            o.append((pre, f"buffer_load_dwordx4 v{VWO+i}, s[{S_WO}:{S_WO+3}], s{sSOK} offen offset:{i*1024} {wofl} lds"))
    return o

def emit_issue_plain(a, vm, u, slot, NT, **kw):
    for pre, ld in unit_issue(u, slot, NT, **kw):
        a.ext(pre)
        if pre: a("s_nop 0")
        a(ld); vm.add(u)

def kreads(slot, extra=0):
    g, o = slot // 3, (slot % 3) * SLOT + extra
    return [f"ds_read_b128 {vr(VK+4*j,4)}, v{VKG[g]} offset:{o+32*j}" for j in range(8)]
def vreads(slot):
    g, o0 = slot // 3, (slot % 3) * SLOT
    o = []
    for ts in range(2):
        for db in range(4):
            for e2 in range(2):
                o.append(f"ds_read_b64_tr_b16 {vr(VV+(db*2+ts)*4+2*e2,2)}, v{VVG[g]} offset:{o0+(2*ts+e2)*256+db*64}")
    return o
def wreads(u, slot):
    return oproj.wo_reads(u, VWG[slot // 3], (slot % 3) * SLOT)

def soft_seq(buf, lag=2):
    s = VS + 16 * buf; p = VP + 8 * buf; acc = VL + buf
    G = []
    for k in range(16 + lag):
        g = []
        if k < 16: g.append(f"v_exp_f32 v{VT+(k&7)}, v{s+k}")
        e = k - lag
        if e >= 0:
            src = VL + (buf ^ 1) if e == 0 else acc
            g.append(f"v_add_f32 v{acc}, v{src}, v{VT+(e&7)}")
            if e & 1: g.append(f"v_cvt_pk_bf16_f32 v{p+e//2}, v{VT+((e-1)&7)}, v{VT+(e&7)}")
        G.append(g)
    return G

def place(gaps, items, lo, hi):
    n = len(items); w = hi - lo + 1
    for i, it in enumerate(items):
        gaps[lo + (i * w) // n] += it

def make_schedule(NT, wo_start=8, nwo=16, gran=1):
    groups = [[('p', 0)]]
    w = 0
    for t0 in range(0, NT, gran):
        g = [('p', t + 1) for t in range(t0, t0 + gran)]
        for t in range(t0, t0 + gran):
            if t >= wo_start and (t & 1) and w < nwo: g.append(('w', w)); w += 1
        groups.append(g)
    groups.append([('w', i) for i in range(w, nwo)])
    seq = [u for g in groups for u in g]
    return groups, seq

class Ring:
    def __init__(self, seq):
        self.seq = seq; self.next = 0; self.free = list(range(NSLOT)); self.slot = {}
    def take(self):
        o = []
        while self.free and self.next < len(self.seq):
            u = self.seq[self.next]; s = self.free.pop(0); self.slot[u] = s; self.next += 1; o.append((u, s))
        return o
    def release(self, us):
        for u in us: self.free.append(self.slot[u])

def init_regs(a):
    for i in range(64): a(f"v_mov_b32 v{VO+i}, 0")
    for i in range(16): a(f"v_mov_b32 v{VC+i}, 0")
    a(f"v_mov_b32 v{VL}, 0"); a(f"v_mov_b32 v{VL+1}, 0")
    for i in range(8): a(f"v_mov_b32 v{VT+i}, 0")
    a(f"s_mov_b32 s{sTHR}, {f2u(-1.0):#x}")
    a(f"s_mov_b32 s{sFLOOR}, 0xff800000")

def main_unrolled(a, L, vm, ring, groups, NT, NB=9, st=False, kvfl="nt", wofl="", pending=None, gran=1, istep=1, ov=None, tst=False, rl=None):
    stubs = []
    pending = list(pending or [])
    a(f"s_waitcnt vmcnt({vm.cnt('q', ('p', 0))})")
    a("s_barrier")
    stamp(a, 4, st)
    s0 = ring.slot[('p', 0)]
    a.ext(kreads(s0))
    q0 = qk(0); k1 = kreads(s0, KAREA)
    for j in range(8):
        a("s_waitcnt lgkmcnt(7)"); a(q0[j]); a(k1[j])
    a("s_nop 7")
    for t in range(NT):
        cur = t & 1; nxt = cur ^ 1
        d = t // gran
        ovA, ovB = ov(t) if ov else (0, 10)
        grp = groups[d + 1]
        if t % gran == 0:
            a(f"s_waitcnt vmcnt({vm.cnt(*grp)}) lgkmcnt(0)")
            a("s_barrier")
            if tst and t % 3 == 0 and t < 33: stamp(a, 2 + t // 3)
            ring.release(groups[d])
            pending += ring.take()
        else:
            a("s_waitcnt lgkmcnt(0)")
        iss = []
        k = min(len(pending), 3)
        now, pending = pending[:k], pending[k:]
        for u, s_ in now:
            for pre, ld in unit_issue(u, s_, NT, kvfl=kvfl, wofl=wofl): iss.append((pre, ld, u))
        pslot = ring.slot[('p', t + 1)]
        do_qk = t + 1 < NT; do_k = t + 2 < NT
        gaps = [[] for _ in range(16)]
        head = []
        step = 1 if len(iss) > 6 else istep
        for i, (pre, ld, u) in enumerate(iss):
            gi = i * step
            assert gi <= 15
            (head if gi == 0 else gaps[gi - 1]).extend(pre)
            gaps[gi].insert(0, ld)
            vm.add(u)
        G = soft_seq(cur)
        vrd = vreads(pslot)
        kk = 0
        for gi, n in enumerate((3, 3, 3, 3, 2, 2, 0, 0)):
            gaps[gi] += vrd[kk:kk + n]; kk += n
        place(gaps, G[NB:], ovA, 5)
        gaps[6] += [f"v_cmp_lt_f32 vcc, s{sTHR}, v{VL+cur}"]
        krd = kreads(pslot) if do_k else []
        gaps[8] += krd[0:4]; gaps[9] += krd[4:8]
        if not do_k: gaps[9] += ["s_nop 7"]
        wr = []
        if cur == 1:
            for u in grp:
                if u[0] == 'w': wr += wreads(u[1], ring.slot[u])
        if wr: place(gaps, [[x] for x in wr], 10, 13)
        if do_qk: place(gaps, soft_seq(nxt)[:NB], ovB, 15)
        m = (qk(nxt) if do_qk else ["s_nop 1"] * 8) + pv(cur)
        a.ext(head)
        for gi in range(16):
            if gi == 8: a("s_waitcnt lgkmcnt(0)")
            a(m[gi]); a.ext(gaps[gi])
            if gi == 6:
                a(f"s_cbranch_vccnz {L}_r{t}")
                a.label(f"{L}_b{t}")
                stubs.append((t, cur))
    assert not pending or True
    a(f"v_mov_b32 v{VL}, v{VL+((NT-1)&1)}")
    return stubs, pending

def emit_stubs(a, L, stubs, rl=None):
    rl = rl or L
    for t, cur in stubs:
        a.label(f"{L}_r{t}")
        a(f"s_call_b64 s[{S_LINK}:{S_LINK+1}], {rl}_rare{cur}")
        a(f"s_branch {L}_b{t}")
```

```python
from common import *

sMI, sNI, sHEAD, sKC, sXO, sWO_, sXB, sWB, sM0X, sCNT, sWN, sWM = range(44, 56)
QVX, QVW = 4, 8

def qproj_pre(a):
    VX, VW = QVX, QVW
    a("v_lshrrev_b32 v2, 4, v1")
    a("v_and_b32 v3, 7, v1")
    a("v_xor_b32 v3, v3, v2")
    a("v_lshlrev_b32 v3, 4, v3")
    a("v_lshrrev_b32 v12, 3, v1")
    a("v_lshl_add_u32 v3, v12, 11, v3")
    for i in range(4):
        if i & 1:
            a(f"v_xor_b32 v{VX+i}, 64, v3")
            a(f"v_add_u32 v{VX+i}, {i*(16384-1024)}, v{VX+i}")
        else:
            a(f"v_add_u32 v{VX+i}, {i*(16384-1024)}, v3")
    a("v_and_b32 v3, 15, v1")
    a("v_lshlrev_b32 v12, 2, v2")
    a("v_xor_b32 v3, v3, v12")
    a("v_lshlrev_b32 v3, 4, v3")
    a("v_lshl_add_u32 v3, v2, 13, v3")
    for i in range(4):
        a(f"v_add_u32 v{VW+i}, {i*(32768-1024)}, v3")

def qproj(a, L, stq="", xfl="", wfl="", st=False, LA=2, before_tail=None, pre_done=False, tail_hook=None):
    VX, VW = QVX, QVW
    if not pre_done: qproj_pre(a)
    a(f"s_and_b32 s{sMI}, s{S_P}, 3")
    a(f"s_lshr_b32 s{sNI}, s{S_P}, 2")
    a(f"s_lshl_b32 s{sHEAD}, s{S_XCD}, 2")
    a(f"s_add_u32 s{sHEAD}, s{sHEAD}, s{sNI}")
    a(f"s_add_u32 s{sKC}, s{sMI}, s{sNI}")
    a(f"s_and_b32 s{sKC}, s{sKC}, 3")
    a(f"s_lshl_b32 s{sKC}, s{sKC}, 2")
    a(f"s_lshl_b32 s{sXB}, s{sMI}, 2"); a(f"s_add_u32 s{sXB}, s{sXB}, s{S_WAVE}"); a(f"s_lshl_b32 s{sXB}, s{sXB}, 16")
    a(f"s_lshl_b32 s{sWB}, s{S_WAVE}, 17"); a(f"s_lshl_b32 s56, s{sHEAD}, 8"); a(f"s_add_u32 s{sWB}, s{sWB}, s56")
    a(f"s_lshl_b32 s{sM0X}, s{S_WAVE}, 12")
    def issue(slot):
        o = []
        o.append(f"s_lshl_b32 s{sXO}, s{sKC}, 7")
        o.append(f"s_add_u32 m0, s{sM0X}, {slot*32768}")
        o.append(f"s_add_u32 s{sXO}, s{sXO}, s{sXB}")
        for i in range(4):
            o.append(f"buffer_load_dwordx4 v{VX+i}, s[{S_X}:{S_X+3}], s{sXO} offen offset:{i*1024} {xfl} lds")
        o.append(f"s_lshl_b32 s{sWO_}, s{sKC}, 19")
        o.append(f"s_add_u32 m0, s{sM0X}, {slot*32768+16384}")
        o.append(f"s_add_u32 s{sWO_}, s{sWO_}, s{sWB}")
        for i in range(4):
            o.append(f"buffer_load_dwordx4 v{VW+i}, s[{S_WQ}:{S_WQ+3}], s{sWO_} offen offset:{i*1024} {wfl} lds")
        o.append(f"s_add_u32 s{sKC}, s{sKC}, 1")
        o.append(f"s_and_b32 s{sKC}, s{sKC}, 15")
        return o
    issued = 0
    a.ext(issue(0)); issued = 1
    a(f"s_and_b32 s{sWN}, s{S_WAVE}, 1"); a(f"s_lshr_b32 s{sWM}, s{S_WAVE}, 1")
    VB, VA = 16, 24
    a("v_and_b32 v2, 31, v1")
    a("v_lshrrev_b32 v3, 5, v1")
    a("v_lshrrev_b32 v12, 1, v2"); a("v_and_b32 v12, 7, v12")
    a("v_xor_b32 v12, v12, v3")
    a("v_lshlrev_b32 v12, 4, v12")
    a("v_lshl_add_u32 v12, v2, 7, v12")
    a(f"s_lshl_b32 s56, s{sWM}, 13")
    a("v_add_u32 v12, s56, v12")
    for j in range(4):
        a(f"v_xor_b32 v{VB+j}, {j*32}, v12")
        a(f"v_add_u32 v{VB+4+j}, 0x10000, v{VB+j}")
    a("v_bfe_u32 v12, v1, 2, 2")
    a("v_lshl_add_u32 v13, v3, 3, v12")
    a("v_lshlrev_b32 v13, 8, v13")
    a("v_bfe_u32 v14, v1, 4, 1"); a("v_lshl_add_u32 v13, v14, 5, v13")
    a("v_and_b32 v14, 1, v1"); a("v_lshl_add_u32 v13, v14, 4, v13")
    a("v_bfe_u32 v14, v1, 1, 1"); a("v_lshl_add_u32 v13, v14, 3, v13")
    a("v_add_u32 v13, 16384, v13")
    a(f"s_lshl_b32 s56, s{sWN}, 1")
    for nb in range(2):
        a(f"s_add_u32 s57, s56, {nb}")
        a("v_xor_b32 v14, s57, v12")
        a(f"v_lshl_add_u32 v{VA+nb}, v14, 6, v13")
        a(f"v_add_u32 v{VA+2+nb}, 0x10000, v{VA+nb}")
    a.ext(issue(1)); issued = 2
    stamp(a, 1, st)
    ACC = 32; FR = 96
    def reads(slot, fs):
        o = []
        hi = slot >> 1; off = (slot & 1) * 32768
        base = FR + fs * 64
        for j in range(4):
            for nb in range(2):
                d = base + (nb * 4 + j) * 4
                for e2 in range(2):
                    o.append(f"ds_read_b64_tr_b16 {vr(d+2*e2,2)}, v{VA+2*hi+nb} offset:{off + (16*j+4*e2)*256}")
            for mb in range(2):
                d = base + 32 + (mb * 4 + j) * 4
                o.append(f"ds_read_b128 {vr(d,4)}, v{VB+4*hi+j} offset:{off + mb*4096}")
        return o
    def mfmas(fs, first):
        o = []
        base = FR + fs * 64
        for j in range(4):
            for nb in range(2):
                for mb in range(2):
                    d = ACC + (nb * 2 + mb) * 16
                    c = "0" if (first and j == 0) else vr(d, 16)
                    o.append(f"v_mfma_f32_32x32x16_bf16 {vr(d,16)}, {vr(base+(nb*4+j)*4,4)}, {vr(base+32+(mb*4+j)*4,4)}, {c}")
        return o
    a("s_waitcnt vmcnt(8)"); a("s_barrier")
    a.ext(reads(0, 0))
    while issued <= LA and issued < 4:
        a.ext(issue(issued)); issued += 1
    stamp(a, 2, st)
    for s in range(16):
        if s == 12 and before_tail: before_tail(a)
        if s < 15:
            a(f"s_waitcnt vmcnt({8*(issued-(s+2))}) lgkmcnt(0)"); a("s_barrier")
            fill = reads((s + 1) & 3, (s + 1) & 1)
            iss = []
            if issued < 16 and issued <= s + 1 + LA:
                assert issued - 4 <= s
                iss = issue(issued & 3); issued += 1
            gaps = [[] for _ in range(16)]
            for i, x in enumerate(fill): gaps[(i * 12) // len(fill)].append(x)
            g = 0; nl = 0
            for x in iss:
                if x.startswith("buffer_load"):
                    gaps[2 * nl + 1].insert(0, x); nl += 1
                else:
                    gaps[min(2 * nl, 15)].append(x)
            mm = mfmas(s & 1, s == 0)
            for i in range(16):
                a(mm[i]); a.ext(gaps[i])
        else:
            a("s_waitcnt lgkmcnt(0)")
            mm = mfmas(s & 1, False)
            extra = [
             "v_bfe_u32 v2, v1, 4, 1", "v_lshlrev_b32 v2, 17, v2", "v_lshrrev_b32 v3, 5, v1", "v_lshl_add_u32 v2, v3, 8, v2",
             "v_and_b32 v3, 15, v1", "v_lshl_add_u32 v2, v3, 4, v2",
             f"s_lshl_b32 s56, s{sMI}, 1", f"s_add_u32 s56, s56, s{sWM}", "s_lshl_b32 s56, s56, 19",
             f"s_lshl_b32 s57, s{sHEAD}, 12", "s_add_u32 s56, s56, s57", f"s_lshl_b32 s57, s{sWN}, 11", "s_add_u32 s56, s56, s57",
             f"s_add_u32 s56, s56, {WS_Q}", "s_add_u32 s57, s56, 0x40000", f"s_mov_b32 s58, {f2u(CSCALE):#x}"]
            if tail_hook: extra += tail_hook()
            order = [j * 4 + k for k in range(4) for j in range(4)]
            mm = [mm[i] for i in order]
            T = FR + (0 if (s & 1) else 64)
            def epi(k):
                nb, mb = k >> 1, k & 1
                d = ACC + k * 16; o = []
                for g in range(2):
                    t = T + 4 * (2 * k + g)
                    for i in range(8): o.append(f"v_mul_f32 v{d+8*g+i}, s58, v{d+8*g+i}")
                    for i in range(4): o.append(f"v_cvt_pk_bf16_f32 v{t+i}, v{d+8*g+2*i}, v{d+8*g+2*i+1}")
                    o.append(f"buffer_store_dwordx4 {vr(t,4)}, v2, s[{S_WS}:{S_WS+3}], s{56+mb} offen offset:{(2*nb+g)*512} {stq}")
                return o
            gaps = [[] for _ in range(16)]
            for i, x in enumerate(extra): gaps[(i * 7) // len(extra)].append(x)
            e0, e1 = epi(0), epi(1)
            for i, x in enumerate(e0): gaps[8 + (i * 4) // len(e0)].append(x)
            for i, x in enumerate(e1): gaps[12 + (i * 4) // len(e1)].append(x)
            gaps[7].append("s_nop 3")
            for i in range(16):
                a(mm[i]); a.ext(gaps[i])
            stamp(a, 6, st)
            a.ext(epi(2)); a.ext(epi(3))
        if s in (3, 7, 11): stamp(a, 3 + s // 4, st)
```

```python
from common import *
SPIN_MAX = 1 << 16

FL_Q  = WS_FLAG
FL_S  = WS_FLAG + 0x2000
FL_O  = WS_FLAG + 0x4000
FL_PO = WS_FLAG + 0x6000

def nonce_publish(a, L, v):
    a(f"s_or_b32 s62, s2, s{S_WAVE}")
    a("s_cmp_lg_u32 s62, 0")
    a(f"s_cbranch_scc1 {L}_np")
    a("s_memrealtime s[62:63]")
    a("s_waitcnt lgkmcnt(0)")
    a("s_or_b32 s62, s62, 1"); a("s_or_b32 s63, s63, 0x80000000")
    a(f"v_mov_b32 v{v}, s62"); a(f"v_mov_b32 v{v+1}, s63"); a(f"v_mov_b32 v{v+2}, 0")
    a("s_mov_b64 exec, 1")
    a(f"global_store_dwordx2 v{v+2}, {vr(v,2)}, s[{S_DBG}:{S_DBG+1}] sc1")
    a("s_mov_b64 exec, -1")
    a.label(f"{L}_np")

def nonce_try(a):
    a(f"s_load_dwordx2 s[{S_NONCE}:{S_NONCE+1}], s[{S_DBG}:{S_DBG+1}], 0")

def nonce_get(a, L, v, tried=False):
    if tried:
        a("s_waitcnt lgkmcnt(0)")
        a(f"s_and_b32 s63, s{S_NONCE}, 1")
        a(f"s_lshr_b32 s64, s{S_NONCE+1}, 31")
        a("s_and_b32 s63, s63, s64")
        a(f"s_cbranch_scc1 {L}_ngx")
    a(f"v_mov_b32 v{v+2}, 0")
    a("s_mov_b32 s62, 0")
    a.label(f"{L}_ng")
    a(f"global_load_dwordx2 {vr(v,2)}, v{v+2}, s[{S_DBG}:{S_DBG+1}] sc1")
    a("s_add_u32 s62, s62, 1")
    a("s_waitcnt vmcnt(0)")
    a(f"v_readfirstlane_b32 s{S_NONCE}, v{v}")
    a(f"v_readfirstlane_b32 s{S_NONCE+1}, v{v+1}")
    a(f"s_cmp_ge_u32 s62, {SPIN_MAX}")
    a(f"s_cbranch_scc1 {L}_ngx")
    a(f"s_and_b32 s63, s{S_NONCE}, 1")
    a(f"s_lshr_b32 s64, s{S_NONCE+1}, 31")
    a("s_and_b32 s63, s63, s64")
    a(f"s_cbranch_scc0 {L}_ng")
    a.label(f"{L}_ngx")

def signal(a, soff, v):
    a(f"v_mov_b32 v{v}, s{S_NONCE}"); a(f"v_mov_b32 v{v+1}, s{S_NONCE+1}"); a(f"v_mov_b32 v{v+2}, 0")
    a("s_waitcnt vmcnt(0)")
    a("s_mov_b64 exec, 1")
    a(f"buffer_store_dwordx2 {vr(v,2)}, v{v+2}, s[{S_WS}:{S_WS+3}], s{soff} offen sc1")
    a("s_mov_b64 exec, -1")

def wait_flags(a, L, soff, n, v, voff_ready=False, sleep=0):
    if not voff_ready:
        a(f"v_and_b32 v{v+2}, {n-1}, v1"); a(f"v_lshlrev_b32 v{v+2}, 3, v{v+2}")
    a("s_mov_b32 s62, 0")
    a.label(f"{L}_w")
    a(f"buffer_load_dwordx2 {vr(v,2)}, v{v+2}, s[{S_WS}:{S_WS+3}], s{soff} offen sc1")
    a("s_add_u32 s62, s62, 1")
    a(f"s_cmp_ge_u32 s62, {SPIN_MAX}")
    a(f"s_cbranch_scc1 {L}_wx")
    a("s_waitcnt vmcnt(0)")
    a(f"v_cmp_ne_u64 vcc, s[{S_NONCE}:{S_NONCE+1}], {vr(v,2)}")
    if sleep:
        a(f"s_cbranch_vccz {L}_wx")
        a(f"s_sleep {sleep}")
        a(f"s_branch {L}_w")
    else:
        a(f"s_cbranch_vccnz {L}_w")
    a.label(f"{L}_wx")
    a("s_waitcnt vmcnt(0)")
```

```python
import sys
from qproj import *
import attn, attn2, oproj
from attn2 import *
from oproj import oproj_setup, oproj_main, sH3, sN0

def gen(fn, mode=None, NTS=32, NTP=32, p_first=3, touch_p=1, help_=True, touch_wo=False, NB=9, woS=8, woP=4, LA=2,
        ovS=None, ovP=None, slotsP=9, tfl="", wofl="", istep=1):
    st = mode == "st"; tst = mode == "tst"; qst = mode == "qst"
    a = Asm()
    header(a, ["; @launch grid=(256,1,1) block=(256,1,1) lds=163840"])
    kn = NAME + "_kernel"
    kernel_begin(a, kn)
    prologue(a, "L_done", stamps=bool(mode), under=qproj_pre)
    a(f"s_cmp_eq_u32 s{S_ROLE}, 0"); a("s_cbranch_scc1 L_S")
    def qflag_wait(L):
        a(f"s_lshr_b32 s65, s{sB}, 2"); a("s_lshl_b32 s65, s65, 5"); a(f"s_lshl_b32 s64, s{sHKV}, 3"); a("s_add_u32 s65, s65, s64")
        a(f"s_lshl_b32 s64, s{S_WAVE}, 1"); a("s_add_u32 s65, s65, s64"); a("s_lshl_b32 s65, s65, 4"); a(f"s_add_u32 s65, s65, {FL_Q}")
        wait_flags(a, L, 65, 4, 28)
        stamp(a, 3, st); stamp(a, 1, tst); stamp(a, 9, qst)
        load_q(a, "sc1")
    def body(L, NT, groups, ring, vm, pending, ov):
        stamp(a, 10, qst)
        stubs, pending = main_unrolled(a, L, vm, ring, groups, NT, NB=NB, st=st, wofl=wofl, ov=ov, tst=tst, pending=pending, istep=istep, rl="La")
        stamp(a, 5, st); stamp(a, 13, tst)
        a("s_waitcnt lgkmcnt(0)"); a("s_barrier")
        ring.release(groups[-2])
        pending += ring.take()
        assert ring.next == len(ring.seq)
        for u, s in pending: emit_issue_plain(a, vm, u, s, NT)
        return stubs
    def wo_tail(groups, ring):
        stamp(a, 6, st)
        a("s_waitcnt vmcnt(0)"); a("s_barrier")
        for u in groups[-1]: a.ext(wreads(u[1], ring.slot[u]))
        a("s_waitcnt lgkmcnt(0)"); a("s_barrier")
    def hook():
        return [f"s_lshl_b32 s65, s{sMI}, 1", f"s_add_u32 s65, s65, s{sWM}", "s_lshl_b32 s65, s65, 5", f"s_add_u32 s65, s65, s{sHEAD}",
                "s_lshl_b32 s65, s65, 1", f"s_add_u32 s65, s65, s{sWN}", "s_lshl_b32 s65, s65, 3", f"s_add_u32 s65, s65, {FL_Q}"]
    qproj(a, "Lq", stq="sc1", before_tail=nonce_try, st=qst, LA=LA, pre_done=True, tail_hook=hook)
    stamp(a, 1, st); stamp(a, 7, qst)
    nonce_get(a, "Lp", 20, tried=True)
    attn.attn_setup(a, NTS, NTP); oproj_setup(a); addr_setup(a)
    init_regs(a)
    signal(a, 65, 28)
    stamp(a, 2, st); stamp(a, 8, qst)
    a("s_barrier")
    groupsP, seqP = make_schedule(NTP, wo_start=woP)
    attn2.NSLOT = slotsP
    ringP = Ring(seqP); vmP = VM()
    attn2.NSLOT = 9
    first = ringP.take()
    for u, s in first[:p_first]: emit_issue_plain(a, vmP, u, s, NTP)
    qflag_wait("Lwp"); vmP.add('q', 8)
    k2 = max(p_first, 2)
    for u, s in first[p_first:k2]: emit_issue_plain(a, vmP, u, s, NTP)
    stubsP = body("LP", NTP, groupsP, ringP, vmP, first[k2:], ovP)
    attn.epilogue_common(a); attn.epilogue_P(a, "Lep")
    wo_tail(groupsP, ringP)
    a("s_branch L_join")
    a.label("L_S")
    nonce_publish(a, "Ln", 28)
    T = 200
    if help_:
        a(f"s_and_b32 s44, s{S_P}, 3"); a(f"s_lshr_b32 s45, s{S_P}, 2")
        a("s_add_u32 s46, s44, s45"); a("s_and_b32 s46, s46, 3"); a("s_lshl_b32 s46, s46, 2"); a("s_add_u32 s46, s46, 2")
        a("v_lshrrev_b32 v2, 1, v0"); a("v_and_b32 v3, 1, v0"); a("v_lshlrev_b32 v3, 7, v3")
        a("v_lshl_add_u32 v4, v2, 11, v3"); a("v_lshl_add_u32 v5, v2, 13, v3")
        a("s_lshl_b32 s47, s44, 18"); a("s_lshl_b32 s48, s46, 7"); a("s_add_u32 s47, s47, s48")
        a(f"buffer_load_dword v{T+1}, v4, s[{S_X}:{S_X+3}], s47 offen")
        a(f"s_lshl_b32 s47, s{S_XCD}, 2"); a("s_add_u32 s47, s47, s45"); a("s_lshl_b32 s47, s47, 8")
        a("s_lshl_b32 s48, s46, 19"); a("s_add_u32 s47, s47, s48")
        a(f"buffer_load_dword v{T+2}, v5, s[{S_WQ}:{S_WQ+3}], s47 offen")
    a(f"s_cmp_lg_u32 s{S_WAVE}, 0"); a("s_cbranch_scc1 L_nocode")
    a("s_getpc_b64 s[64:65]")
    a.label("L_pc")
    a(f"s_sub_u32 s64, s64, L_pc-{kn}"); a("s_subb_u32 s65, s65, 0")
    a(f"s_lshl_b32 s62, s{S_P}, 13")
    a("v_lshlrev_b32 v2, 7, v1"); a("v_add_u32 v2, s62, v2")
    a(f"v_min_u32 v2, L_end-{kn}-4, v2")
    a(f"global_load_dword v{T}, v2, s[64:65]")
    a.label("L_nocode")
    attn.attn_setup(a, NTS, NTP); oproj_setup(a); addr_setup(a)
    groupsS, seqS = make_schedule(NTS, wo_start=woS)
    ringS = Ring(seqS); vmS = VM()
    firstS = ringS.take()
    a("v_lshlrev_b32 v28, 7, v0")
    a(f"s_mov_b32 s{S_K+2}, {2*262144}"); a(f"s_mov_b32 s{S_V+2}, {2*262144}")
    def touch(srd, off, r):
        a(f"s_mov_b32 s62, {off}")
        a(f"buffer_load_dword v{r}, v28, s[{srd}:{srd+3}], s62 offen {tfl}")
    for u, s in firstS[:5]: emit_issue_plain(a, vmS, u, s, NTS)
    if touch_p >= 1: touch(S_K, NTS * 8192, T + 3); touch(S_V, NTS * 8192, T + 4)
    for u, s in firstS[5:]: emit_issue_plain(a, vmS, u, s, NTS)
    if touch_p >= 2: touch(S_K, NTS * 8192 + 32768, T + 5)
    if touch_p >= 3: touch(S_V, NTS * 8192 + 32768, T + 6)
    a(f"s_mov_b32 s{S_K+2}, {NTS*8192}"); a(f"s_mov_b32 s{S_V+2}, {NTS*8192}")
    nonce_try(a)
    init_regs(a)
    stamp(a, 1, st)
    for i in range(1, 8): stamp(a, i, qst)
    nonce_get(a, "Ls", 28, tried=True)
    stamp(a, 2, st); stamp(a, 8, qst)
    qflag_wait("Lws"); vmS.add('q', 8)
    stubsS = body("LS", NTS, groupsS, ringS, vmS, [], ovS)
    attn.epilogue_common(a); attn.epilogue_S(a)
    wo_tail(groupsS, ringS)
    a.label("L_join")
    oproj_main(a, "Lo", st=st, waitflags=True, stbase=7)
    if mode:
        a("s_waitcnt vmcnt(0)")
        n = {"st": 12, "tst": 15, "qst": 12}[mode]
        stamp(a, n - 1)
        write_stamps(a, n, "L_done")
    else:
        a.label("L_done")
    a("s_endpgm")
    emit_stubs(a, "LP", stubsP, "La"); emit_stubs(a, "LS", stubsS, "La")
    rare(a, "La", 0); rare(a, "La", 1)
    a.label("L_end")
    descriptor(a, kn)
    print(fn, "hazards:", check_hazards(a.lines), "lines", len(a.lines))
    open("../" + fn, "w").write(a.text())
if __name__ == "__main__":
    gen("v3.s"); gen("v3_st.s", mode="st"); gen("v3_q.s", mode="qst"); gen("v3_t.s", mode="tst")
    gen("v3_q3.s", mode="qst", LA=3); gen("v3_qn.s", mode="qst", help_=False)
```

```python
import sys
from qproj import *
import attn, attn2, oproj
from attn2 import *
from oproj import oproj_setup, oproj_main, sH3, sN0

def gen(fn, mode=None, NTS=32, NTP=32, p_first=3, touch_p=1, help_=True, touch_wo=False, NB=9, woS=8, woP=4, LA=2,
        ovS=None, ovP=None, slotsP=9, tfl="", wofl="", istep=1, dbg=0):
    st = mode == "st"; tst = mode == "tst"; qst = mode == "qst"
    a = Asm()
    header(a, ["; @launch grid=(256,1,1) block=(256,1,1) lds=163840"])
    kn = NAME + "_kernel"
    kernel_begin(a, kn)
    prologue(a, "L_done", stamps=bool(mode), under=qproj_pre)
    a(f"s_cmp_eq_u32 s{S_ROLE}, 0"); a("s_cbranch_scc1 L_S")
    def qflag_wait(L):
        a(f"s_lshr_b32 s65, s{sB}, 2"); a("s_lshl_b32 s65, s65, 5"); a(f"s_lshl_b32 s64, s{sHKV}, 3"); a("s_add_u32 s65, s65, s64")
        a(f"s_lshl_b32 s64, s{S_WAVE}, 1"); a("s_add_u32 s65, s65, s64"); a("s_lshl_b32 s65, s65, 4"); a(f"s_add_u32 s65, s65, {FL_Q}")
        wait_flags(a, L, 65, 4, 28)
        stamp(a, 3, st); stamp(a, 1, tst); stamp(a, 9, qst)
        load_q(a, "sc1")
    def body(L, NT, groups, ring, vm, pending, ov):
        stamp(a, 10, qst)
        stubs, pending = main_unrolled(a, L, vm, ring, groups, NT, NB=NB, st=st, wofl=wofl, ov=ov, tst=tst, pending=pending, istep=istep, rl="La")
        stamp(a, 5, st); stamp(a, 13, tst)
        a("s_waitcnt lgkmcnt(0)"); a("s_barrier")
        ring.release(groups[-2])
        pending += ring.take()
        assert ring.next == len(ring.seq)
        for u, s in pending: emit_issue_plain(a, vm, u, s, NT)
        return stubs
    def wo_tail(groups, ring):
        stamp(a, 6, st)
        a("s_waitcnt vmcnt(0)"); a("s_barrier")
        for u in groups[-1]: a.ext(wreads(u[1], ring.slot[u]))
        a("s_waitcnt lgkmcnt(0)"); a("s_barrier")
    def hook():
        return [f"s_lshl_b32 s65, s{sMI}, 1", f"s_add_u32 s65, s65, s{sWM}", "s_lshl_b32 s65, s65, 5", f"s_add_u32 s65, s65, s{sHEAD}",
                "s_lshl_b32 s65, s65, 1", f"s_add_u32 s65, s65, s{sWN}", "s_lshl_b32 s65, s65, 3", f"s_add_u32 s65, s65, {FL_Q}"]
    qproj(a, "Lq", stq="sc1", before_tail=nonce_try, st=qst, LA=LA, pre_done=True, tail_hook=hook)
    stamp(a, 1, st); stamp(a, 7, qst)
    nonce_get(a, "Lp", 20, tried=True)
    attn.attn_setup(a, NTS, NTP); oproj_setup(a); addr_setup(a)
    init_regs(a)
    signal(a, 65, 28)
    stamp(a, 2, st); stamp(a, 8, qst)
    a("s_barrier")
    groupsP, seqP = make_schedule(NTP, wo_start=woP)
    attn2.NSLOT = slotsP
    ringP = Ring(seqP); vmP = VM()
    attn2.NSLOT = 9
    first = ringP.take()
    for u, s in first[:p_first]: emit_issue_plain(a, vmP, u, s, NTP)
    qflag_wait("Lwp"); vmP.add('q', 8)
    k2 = max(p_first, 2)
    for u, s in first[p_first:k2]: emit_issue_plain(a, vmP, u, s, NTP)
    stubsP = body("LP", NTP, groupsP, ringP, vmP, first[k2:], ovP)
    attn.epilogue_common(a); attn.epilogue_P(a, "Lep")
    wo_tail(groupsP, ringP)
    a("s_branch L_join")
    a.label("L_S")
    nonce_publish(a, "Ln", 28)
    T = 200
    if help_:
        a(f"s_and_b32 s44, s{S_P}, 3"); a(f"s_lshr_b32 s45, s{S_P}, 2")
        a("s_add_u32 s46, s44, s45"); a("s_and_b32 s46, s46, 3"); a("s_lshl_b32 s46, s46, 2"); a("s_add_u32 s46, s46, 2")
        a("v_lshrrev_b32 v2, 1, v0"); a("v_and_b32 v3, 1, v0"); a("v_lshlrev_b32 v3, 7, v3")
        a("v_lshl_add_u32 v4, v2, 11, v3"); a("v_lshl_add_u32 v5, v2, 13, v3")
        a("s_lshl_b32 s47, s44, 18"); a("s_lshl_b32 s48, s46, 7"); a("s_add_u32 s47, s47, s48")
        a(f"buffer_load_dword v{T+1}, v4, s[{S_X}:{S_X+3}], s47 offen")
        a(f"s_lshl_b32 s47, s{S_XCD}, 2"); a("s_add_u32 s47, s47, s45"); a("s_lshl_b32 s47, s47, 8")
        a("s_lshl_b32 s48, s46, 19"); a("s_add_u32 s47, s47, s48")
        a(f"buffer_load_dword v{T+2}, v5, s[{S_WQ}:{S_WQ+3}], s47 offen")
    a(f"s_cmp_lg_u32 s{S_WAVE}, 0"); a("s_cbranch_scc1 L_nocode")
    a("s_getpc_b64 s[64:65]")
    a.label("L_pc")
    a(f"s_sub_u32 s64, s64, L_pc-{kn}"); a("s_subb_u32 s65, s65, 0")
    a(f"s_lshl_b32 s62, s{S_P}, 13")
    a("v_lshlrev_b32 v2, 7, v1"); a("v_add_u32 v2, s62, v2")
    a(f"v_min_u32 v2, L_end-{kn}-4, v2")
    a(f"global_load_dword v{T}, v2, s[64:65]")
    a.label("L_nocode")
    attn.attn_setup(a, NTS, NTP); oproj_setup(a); addr_setup(a)
    groupsS, seqS = make_schedule(NTS, wo_start=woS)
    ringS = Ring(seqS); vmS = VM()
    firstS = ringS.take()
    a("v_lshlrev_b32 v28, 7, v0")
    a(f"s_mov_b32 s{S_K+2}, {2*262144}"); a(f"s_mov_b32 s{S_V+2}, {2*262144}")
    def touch(srd, off, r):
        a(f"s_mov_b32 s62, {off}")
        a(f"buffer_load_dword v{r}, v28, s[{srd}:{srd+3}], s62 offen {tfl}")
    for u, s in firstS[:5]: emit_issue_plain(a, vmS, u, s, NTS)
    if touch_p >= 1: touch(S_K, NTS * 8192, T + 3); touch(S_V, NTS * 8192, T + 4)
    for u, s in firstS[5:]: emit_issue_plain(a, vmS, u, s, NTS)
    if touch_p >= 2: touch(S_K, NTS * 8192 + 32768, T + 5)
    if touch_p >= 3: touch(S_V, NTS * 8192 + 32768, T + 6)
    a(f"s_mov_b32 s{S_K+2}, {NTS*8192}"); a(f"s_mov_b32 s{S_V+2}, {NTS*8192}")
    nonce_try(a)
    init_regs(a)
    stamp(a, 1, st)
    for i in range(1, 8): stamp(a, i, qst)
    nonce_get(a, "Ls", 28, tried=True)
    stamp(a, 2, st); stamp(a, 8, qst)
    qflag_wait("Lws"); vmS.add('q', 8)
    stubsS = body("LS", NTS, groupsS, ringS, vmS, [], ovS)
    attn.epilogue_common(a); attn.epilogue_S(a)
    wo_tail(groupsS, ringS)
    a.label("L_join")
    oproj_main(a, "Lo", st=st, waitflags=True, stbase=7)
    if mode:
        a("s_waitcnt vmcnt(0)")
        n = {"st": 12, "tst": 15, "qst": 12}[mode]
        stamp(a, n - 1)
        if dbg:
            a("s_waitcnt lgkmcnt(0)")
            a(f"s_cmp_lg_u32 s2, {dbg}"); a("s_cbranch_scc1 L_done")
            a(f"s_cmp_lg_u32 s{S_WAVE}, 0"); a("s_cbranch_scc1 L_done")
            a("v_mov_b32 v2, 0"); a("s_mov_b64 exec, 1")
            for i in range(1, n):
                a(f"s_sub_u32 s44, s{S_STAMP+2*i}, s{S_STAMP}"); a("v_mov_b32 v4, s44")
                a(f"global_store_dword v2, v4, s[{S_DBG}:{S_DBG+1}] offset:{4*(i+1)}")
            a.label("L_done")
        else:
            write_stamps(a, n, "L_done")
    else:
        a.label("L_done")
    a("s_endpgm")
    emit_stubs(a, "LP", stubsP, "La"); emit_stubs(a, "LS", stubsS, "La")
    rare(a, "La", 0); rare(a, "La", 1)
    a.label("L_end")
    descriptor(a, kn)
    print(fn, "hazards:", check_hazards(a.lines), "lines", len(a.lines))
    open("../" + fn, "w").write(a.text())
if __name__ == "__main__":
    gen("v3.s"); gen("v3_st.s", mode="st"); gen("v3_q.s", mode="qst"); gen("v3_t.s", mode="tst")
    gen("v3_dbg_st.s", mode="st", dbg=72); gen("v3_dbg_t.s", mode="tst", dbg=72)
```
